```python
import torch

def _softmax(x, axis=-1):
    return torch.softmax(x, dim=axis)
def _gelu(x):
    return torch.nn.functional.gelu(x, approximate="tanh")
def _silu(x):
    return torch.nn.functional.silu(x)
def _sigmoid(x):
    return torch.sigmoid(x)
def _layernorm(x, axis=-1, eps=1e-5):
    m = x.mean(dim=axis, keepdim=True)
    v = x.var(dim=axis, keepdim=True, unbiased=False)
    return (x - m) / torch.sqrt(v + eps)
def _scatter_add(tgt, idx, src, axis=0):
    return tgt.clone().index_add_(axis, idx, src)
def _segment_sum(src, seg, n):
    out = torch.zeros((n,) + src.shape[1:], dtype=src.dtype)
    return out.index_add_(0, seg, src)
def _pad(x, pw):
    flat = tuple(v for pair in reversed(pw) for v in pair)
    return torch.nn.functional.pad(x, flat)

kernel_name = 'standalone__molecular_angular_gemnet__graph'

def setup_inputs():

    _w = (lambda a: (lambda t: t.to(torch.bfloat16) if t.is_floating_point() else t)(torch.as_tensor(a)))
    N, deg, De, L = 10000, 32, 4, 1
    E = N * deg
    T = E * deg
    NR = 8
    dist = torch.rand(E).to(float)
    angle = (torch.rand(T) * torch.pi).to(float)
    centers = torch.linspace(0.0, 1.0, NR).to(float)
    ang_freq = torch.arange(1, L + 1).to(float)
    return {
        "m": _w((lambda *s: torch.randn(*s, dtype=torch.bfloat16) * 0.05)(E, De)),
        "idx_in": _w((lambda lo, hi, *s: torch.randint(lo, hi, s))(0, E, T).to(torch.int64)),
        "idx_out": _w((lambda lo, hi, *s: torch.randint(lo, hi, s))(0, E, T).to(torch.int64)),
        "dist": _w(dist),
        "angle": _w(angle),
        "centers": _w(centers),
        "ang_freq": _w(ang_freq),
        "w_rbf": _w((lambda *s: torch.randn(*s, dtype=torch.bfloat16) * 0.4)(NR, De)),
        "w_sbf": _w((lambda *s: torch.randn(*s, dtype=torch.bfloat16) * 0.4)(NR * L, De)),
        "w_down": _w((lambda *s: torch.randn(*s, dtype=torch.bfloat16) * 0.4)(De, De)),
        "w_up": _w((lambda *s: torch.randn(*s, dtype=torch.bfloat16) * 0.4)(De, De)),
    }

def reference(m, idx_in, idx_out, dist, angle, centers, ang_freq, w_rbf, w_sbf, w_down, w_up):
    E, De = m.shape[0], m.shape[1]
    NR = centers.shape[0]
    L = ang_freq.shape[0]
    rbf = torch.exp(-10.0 * (dist[:, None] - centers[None, :]) ** 2)
    cbf = torch.cos(ang_freq[None, :] * angle[:, None])
    rbf_t = rbf[idx_out]
    sbf = torch.reshape(rbf_t[:, :, None] * cbf[:, None, :], (-1, NR * L))
    x = (m[idx_in] @ w_down) * (sbf @ w_sbf)
    agg = _segment_sum(x, idx_out, E)
    return m + (agg @ w_up) * (rbf @ w_rbf)
```

```python
class Asm:
    def __init__(self):
        self.lines = []
        self.nlab = 0
    def e(self, s=""):
        for l in s.split("\n"):
            self.lines.append("    " + l.strip() if l.strip() and not l.strip().endswith(":") else l.strip())
    def c(self, s):
        self.lines.append("    ; " + s)
    def raw(self, s):
        self.lines.append(s)
    def label(self, name):
        self.lines.append(name + ":")
    def newlabel(self, p="L"):
        self.nlab += 1
        return f"{p}_{self.nlab}"
    def text(self):
        return "\n".join(self.lines) + "\n"

def v(i, n=1):
    return f"v{i}" if n == 1 else f"v[{i}:{i+n-1}]"
def s(i, n=1):
    return f"s{i}" if n == 1 else f"s[{i}:{i+n-1}]"
```

```python
from asmlib import Asm, v, s
import gen as G
from gen import srd, dpp_scan_incl, stamp, stamp_rt, stamp_out

ACC0 = 0; ACC1 = 40000; SLICE = 80000; MAP = [145536, 145536 + 8192]; MISC = 161920
CAP = 2048
LDS2 = 163840

def gen_k2(a):
    NS = G.NS
    vE = 2; vP = 12; vC = 22; vSub = 23
    def RW(b, r): return 24 + 16 * b + 8 * r
    def V(r, j): return 56 + 16 * r + 4 * j
    vT = 88
    vMax, vMin, vG0, vSl = 104, 105, 106, 107
    vMapW = 108
    def MK(b, r, j): return 40 + 16 * b + 8 * r + 2 * j
    sGt = 72; sS = 82; sInv = 83; sW = 84; sHi = 85; sQ = 86; sO = 87; sJ = 88
    sT = 90
    a.raw(".p2align 8")
    a.raw(".type k2_kernel,@function")
    a.label("k2_kernel")
    a.e("s_cmp_ge_u32 s2, 256")
    a.e("s_cbranch_scc1 k2_end")
    stamp_rt(a, 0, base=0) if False else None
    a.e("s_load_dwordx2 s[4:5], s[0:1], 0")
    a.e("s_load_dwordx2 s[6:7], s[0:1], 104")
    a.e("s_and_b32 s8, s2, 7")
    a.e("s_lshl_b32 s8, s8, 5")
    a.e("s_lshr_b32 s9, s2, 3")
    a.e(f"s_add_u32 {s(sJ)}, s8, s9")
    a.e(f"s_lshr_b32 {s(sQ)}, {s(sJ)}, 6")
    a.e(f"s_and_b32 {s(sO)}, {s(sJ)}, 63")
    a.e("v_lshlrev_b32 v1, 4, v0")
    a.e(f"v_readfirstlane_b32 {s(sW)}, v0")
    a.e(f"v_lshrrev_b32 {v(vC)}, 2, v0")
    a.e(f"v_and_b32 {v(vSub)}, 3, v0")
    a.e(f"s_mov_b32 {s(sHi)}, 0xffff0000")
    a.e(f"s_lshr_b32 {s(sW)}, {s(sW)}, 6")
    a.e("s_waitcnt lgkmcnt(0)")
    srd(a, 20, 4, 5, num=G.E_*8)
    srd(a, 24, 6, 7, off_imm=G.OFF_REC, num=G.NCH*G.RSTRIDE)
    a.e(f"s_mul_i32 s8, {s(sJ)}, 40")
    srd(a, 28, 6, 7, off_sreg=8, off_imm=G.OFF_TAB, num=G.NCH*G.TABSTR - 10200)
    srd(a, 32, 6, 7, off_imm=G.OFF_MAX, num=4096)
    a.e(f"s_mul_i32 s8, {s(sQ)}, {G.PARTSTR}")
    a.e(f"s_mul_i32 s9, {s(sO)}, {G.A_*16}")
    a.e("s_add_u32 s8, s8, s9")
    srd(a, 36, 6, 7, off_sreg=8, off_imm=G.OFF_PART, num=G.A_*16)
    a.e(f"s_mul_i32 s8, {s(sJ)}, 40")
    a.e(f"s_sub_u32 s30, {G.NCH*G.TABSTR}, s8")
    a.e(f"v_mul_u32_u24 {v(vT)}, {G.TABSTR}, {v(vC)}")
    a.e(f"buffer_load_dwordx4 {v(vE,4)}, {v(vT)}, s[28:31], 0 offen")
    a.e(f"buffer_load_dwordx4 {v(vE+4,4)}, {v(vT)}, s[28:31], 0 offen offset:16")
    a.e(f"buffer_load_dwordx2 {v(vE+8,2)}, {v(vT)}, s[28:31], 0 offen offset:32")
    a.e(f"v_and_b32 {v(vT+1)}, 63, v0")
    a.e(f"v_lshlrev_b32 {v(vT+1)}, 6, {v(vT+1)}")
    for i in range(4):
        a.e(f"buffer_load_dwordx4 {v(56+4*i,4)}, {v(vT+1)}, s[32:35], 0 offen offset:{16*i}")
    def fill(sl):
        a.e(f"s_lshl_b32 {s(sT)}, {s(sW)}, 10")
        a.e(f"s_mul_i32 {s(sT+1)}, {s(sQ)}, {G.B_*8}")
        for i in range(4):
            a.e(f"s_add_u32 m0, {s(sT)}, {SLICE + i*16384}")
            a.e(f"s_add_u32 {s(sT+2)}, {s(sT+1)}, {sl*4*G.B_*8 + i*16384}")
            a.e(f"buffer_load_dwordx4 v1, s[20:23], {s(sT+2)} offen lds")
    fill(0)
    a.e(f"v_mul_u32_u24 {v(vC)}, {G.RSTRIDE//8}, {v(vC)}")
    a.e(f"v_lshlrev_b32 {v(vC)}, 3, {v(vC)}")
    for i in range(4): a.e(f"v_mov_b32 {v(vT+4+i)}, 0")
    for i in range(4):
        a.e(f"ds_write_b128 v1, {v(vT+4,4)} offset:{i*16384}")
    a.e(f"v_add_u32 {v(vT+2)}, 0x10000, v1")
    a.e("v_cmp_gt_u32 vcc, 904, v0")
    a.e("s_and_saveexec_b64 s[8:9], vcc")
    a.e(f"ds_write_b128 {v(vT+2)}, {v(vT+4,4)}")
    a.e("s_mov_b64 exec, s[8:9]")
    a.e(f"v_mov_b32 {v(vMax)}, 0")
    a.e(f"v_mov_b32 {v(vMin)}, 0")
    a.e(f"v_mov_b32 {v(vSl)}, {SLICE}")
    a.e(f"v_lshlrev_b32 {v(vG0)}, 2, v0")
    a.e("s_waitcnt vmcnt(4)")
    mx = 56
    t = vT + 8
    a.e(f"v_max3_u32 {v(t)}, {v(mx)}, {v(mx+1)}, {v(mx+2)}")
    for i in range(3, 15, 2):
        a.e(f"v_max3_u32 {v(t)}, {v(t)}, {v(mx+i)}, {v(mx+i+1)}")
    a.e(f"v_max_u32 {v(t)}, {v(t)}, {v(mx+15)}")
    a.e(f"v_mov_b32 {v(t+2)}, 0x7fff")
    for i in range(16):
        a.e(f"v_cmp_eq_u32 vcc, 0, {v(mx+i)}")
        a.e("s_nop 1")
        a.e(f"v_cndmask_b32 {v(mx+i)}, {v(mx+i)}, {v(t+2)}, vcc")
    a.e(f"v_min3_u32 {v(t+1)}, {v(mx)}, {v(mx+1)}, {v(mx+2)}")
    for i in range(3, 15, 2):
        a.e(f"v_min3_u32 {v(t+1)}, {v(t+1)}, {v(mx+i)}, {v(mx+i+1)}")
    a.e(f"v_min_u32 {v(t+1)}, {v(t+1)}, {v(mx+15)}")
    for st in ["row_shr:1 row_mask:0xf", "row_shr:2 row_mask:0xf", "row_shr:4 row_mask:0xf", "row_shr:8 row_mask:0xf", "row_bcast:15 row_mask:0xa", "row_bcast:31 row_mask:0xc"]:
        a.e("s_nop 1")
        a.e(f"v_max_u32_dpp {v(t)}, {v(t)}, {v(t)} {st} bank_mask:0xf")
        a.e(f"v_min_u32_dpp {v(t+1)}, {v(t+1)}, {v(t+1)} {st} bank_mask:0xf")
    a.e("s_nop 1")
    a.e(f"v_readlane_b32 {s(sT)}, {v(t)}, 63")
    a.e(f"v_readlane_b32 {s(sT+1)}, {v(t+1)}, 63")
    a.e("s_nop 3")
    a.e(f"s_mov_b32 {s(sT+3)}, 0")
    a.e(f"s_lshr_b32 {s(sT+2)}, {s(sT)}, 7")
    a.e(f"s_lshr_b32 {s(sT+4)}, {s(sT+1)}, 7")
    a.e(f"s_cmp_eq_u32 {s(sT)}, 0")
    a.e(f"s_cselect_b32 {s(sT+2)}, 127, {s(sT+2)}")
    a.e(f"s_cmp_ge_u32 {s(sT+2)}, 255")
    a.e(f"s_cselect_b32 {s(sT+3)}, 1, {s(sT+3)}")
    a.e(f"s_cmp_lt_u32 {s(sT+2)}, 27")
    a.e(f"s_cselect_b32 {s(sT+3)}, 1, {s(sT+3)}")
    a.e(f"s_add_u32 {s(sT+4)}, {s(sT+4)}, 10")
    a.e(f"s_cmp_lt_u32 {s(sT+4)}, {s(sT+2)}")
    a.e(f"s_cselect_b32 {s(sT+3)}, 1, {s(sT+3)}")
    a.e(f"s_mov_b32 s89, {s(sT+3)}")
    a.e(f"s_sub_u32 {s(sS)}, 280, {s(sT+2)}")
    a.e(f"s_lshl_b32 {s(sS)}, {s(sS)}, 23")
    a.e(f"s_sub_u32 {s(sInv)}, {s(sT+2)}, 26")
    a.e(f"s_lshl_b32 {s(sInv)}, {s(sInv)}, 23")
    X = vP
    a.e(f"v_cmp_eq_u32 vcc, 0, {v(vSub)}")
    for sl in range(NS):
        a.e(f"v_lshrrev_b32 {v(vT+sl)}, 14, {v(vE+sl)}")
    for sl in range(NS):
        a.e(f"v_add_u32 {v(vT+sl)}, 3, {v(vT+sl)}")
    for sl in range(NS):
        a.e(f"v_lshrrev_b32 {v(vT+sl)}, 2, {v(vT+sl)}")
    for sl in range(NS):
        a.e(f"v_cndmask_b32 {v(X+sl)}, 0, {v(vT+sl)}, vcc")
    dpp_scan_incl(a, [X+sl for sl in range(NS)])
    a.e(f"s_lshl_b32 {s(sT)}, {s(sW)}, 2")
    a.e(f"s_add_u32 {s(sT)}, {s(sT)}, {MISC}")
    a.e(f"v_mov_b32 {v(vT+10)}, {s(sT)}")
    a.e("s_mov_b32 exec_lo, 0")
    a.e("s_mov_b32 exec_hi, 0x80000000")
    for sl in range(NS):
        a.e(f"ds_write_b32 {v(vT+10)}, {v(X+sl)} offset:{64*sl}")
    a.e("s_mov_b64 exec, -1")
    for sl in range(NS):
        a.e(f"v_sub_u32 {v(X+sl)}, {v(X+sl)}, {v(vT+sl)}")
    a.e("s_waitcnt lgkmcnt(0)")
    a.e("s_barrier")
    a.e(f"v_and_b32 {v(vT+10)}, 15, v0")
    a.e(f"v_lshlrev_b32 {v(vT+10)}, 2, {v(vT+10)}")
    a.e(f"v_add_u32 {v(vT+10)}, {MISC}, {v(vT+10)}")
    W = 56
    for sl in range(NS):
        a.e(f"ds_read_b32 {v(W+sl)}, {v(vT+10)} offset:{64*sl}")
    a.e("s_waitcnt lgkmcnt(0)")
    for sl in range(NS):
        a.e(f"v_mov_b32 {v(W+10+sl)}, {v(W+sl)}")
    dpp_scan_incl(a, [W+10+sl for sl in range(NS)], full=False)
    for sl in range(NS):
        a.e(f"v_sub_u32 {v(W+sl)}, {v(W+10+sl)}, {v(W+sl)}")
    a.e("s_nop 1")
    for sl in range(NS):
        a.e(f"v_readlane_b32 {s(sGt+sl)}, {v(W+10+sl)}, 15")
    for sl in range(NS):
        a.e(f"v_readlane_b32 {s(sT)}, {v(W+sl)}, {s(sW)}")
        a.e("s_nop 1")
        a.e(f"v_add_u32 {v(X+sl)}, {s(sT)}, {v(X+sl)}")
        a.e("s_nop 0")
    for sl in range(NS):
        a.e(f"s_cmp_gt_u32 {s(sGt+sl)}, {CAP}")
        a.e(f"s_cselect_b32 s89, 1, s89")
    a.e("s_cmp_lg_u32 s89, 0")
    a.e("s_cbranch_scc1 k2_slow")

    def build_map(sl, buf, wb=None):
        L = a.newlabel("k2_map"); Ld = a.newlabel("k2_mapd")
        cnt, gi, ent, ad, rem = vT, vT+1, vT+2, vT+3, vT+4
        a.e(f"v_lshrrev_b32 {v(cnt)}, 14, {v(vE+sl)}")
        a.e(f"v_and_b32 {v(ent)}, 0x3fff, {v(vE+sl)}")
        a.e(f"v_add_u32 {v(ent)}, {v(ent)}, {v(vSub)}")
        a.e(f"v_mad_u32_u24 {v(ent)}, {v(ent)}, 24, {v(vC)}")
        a.e(f"v_lshlrev_b32 {v(rem)}, 2, {v(vSub)}")
        a.e(f"v_sub_u32 {v(rem)}, {v(cnt)}, {v(rem)}")
        a.e(f"v_add_u32 {v(ad)}, {v(vP+sl)}, {v(vSub)}")
        a.e(f"v_lshlrev_b32 {v(ad)}, 2, {v(ad)}")
        a.e(f"v_add_u32 {v(ad)}, {MAP[buf]}, {v(ad)}")
        a.label(L)
        a.e(f"v_cmpx_lt_i32 vcc, 0, {v(rem)}")
        a.e(f"s_cbranch_execz {Ld}")
        a.e(f"v_min_u32 {v(gi)}, 4, {v(rem)}")
        a.e(f"v_add3_u32 {v(gi)}, {v(gi)}, {v(ent)}, -1")
        a.e(f"ds_write_b32 {v(ad)}, {v(gi)}")
        a.e(f"v_add_u32 {v(ent)}, 96, {v(ent)}")
        a.e(f"v_add_u32 {v(ad)}, 16, {v(ad)}")
        a.e(f"v_add_u32 {v(rem)}, -16, {v(rem)}")
        a.e(f"s_branch {L}")
        a.label(Ld)
        a.e("s_mov_b64 exec, -1")

    def load_records(sl, b):
        for r in range(2):
            Ls = a.newlabel("k2_lr")
            R = RW(b, r)
            m0 = MK(b, r, 0)
            if r == 1:
                a.e(f"s_lshl_b32 {s(sT)}, {s(sW)}, 6")
                a.e(f"s_add_u32 {s(sT)}, {s(sT)}, 1024")
                a.e(f"s_mov_b64 {s(m0,2)}, 0")
                a.e(f"s_cmp_gt_u32 {s(sGt+sl)}, {s(sT)}")
                a.e(f"s_cbranch_scc0 {Ls}")
                a.e(f"v_add_u32 {v(vT+8)}, 1024, v0")
                a.e(f"v_cmp_gt_u32 {s(m0,2)}, {s(sGt+sl)}, {v(vT+8)}")
            else:
                a.e(f"v_cmp_gt_u32 {s(m0,2)}, {s(sGt+sl)}, v0")
            a.e(f"ds_read_b32 {v(R+6)}, {v(vG0)} offset:0" if False else "")
            a.e(f"v_add_u32 {v(vT+9)}, {MAP[b] + 4096*r}, {v(vG0)}")
            a.e(f"ds_read_b32 {v(R+6)}, {v(vT+9)}")
            a.e(f"s_mov_b64 exec, {s(m0,2)}")
            a.e(f"s_cbranch_execz {Ls}")
            a.e("s_waitcnt lgkmcnt(0)")
            a.e(f"v_and_b32 {v(vT+8)}, 3, {v(R+6)}")
            a.e(f"v_and_b32 {v(R+7)}, -4, {v(R+6)}")
            for j in range(1, 4):
                a.e(f"v_cmp_le_u32 {s(MK(b,r,j),2)}, {j}, {v(vT+8)}")
            a.e(f"buffer_load_dwordx4 {v(R,4)}, {v(R+7)}, s[24:27], 0 offen{G.NT_REC_LD}")
            a.e(f"buffer_load_dwordx2 {v(R+4,2)}, {v(R+7)}, s[24:27], 0 offen offset:16{G.NT_REC_LD}")
            a.label(Ls)
            a.e("s_mov_b64 exec, -1")

    def rows(b, body):
        for r in range(2):
            Ls = a.newlabel("k2_row")
            a.e(f"s_mov_b64 exec, {s(MK(b,r,0),2)}")
            a.e(f"s_cbranch_execz {Ls}")
            body(r)
            a.label(Ls)
        a.e("s_mov_b64 exec, -1")

    def check(b):
        def body(r):
            for j in range(4):
                if j: a.e(f"s_mov_b64 exec, {s(MK(b,r,j),2)}")
                x = V(r, j)
                a.e(f"v_max3_i32 {v(vMax)}, {v(vMax)}, {v(x)}, {v(x+1)}")
                a.e(f"v_min3_i32 {v(vMin)}, {v(vMin)}, {v(x)}, {v(x+1)}")
                a.e(f"v_max3_i32 {v(vMax)}, {v(vMax)}, {v(x+2)}, {v(x+3)}")
                a.e(f"v_min3_i32 {v(vMin)}, {v(vMin)}, {v(x+2)}, {v(x+3)}")
        rows(b, body)

    def gather(b):
        def body(r):
            R = RW(b, r)
            for j in range(4):
                a.e(f"v_mad_u32_u16 {v(vT+j)}, {v(R+j)}, 8, {v(vSl)}")
            for j in range(4):
                if j: a.e(f"s_mov_b64 exec, {s(MK(b,r,j),2)}")
                a.e(f"ds_read_b64 {v(V(r,j),2)}, {v(vT+j)}")
        rows(b, body)

    def accumulate(b, f32=False):
        def body(r):
            R = RW(b, r)
            for j in range(4):
                x = V(r, j); cs = vT + 8 + j; ao = vT + 12 + j
                C = R + 4 + (j >> 1)
                if j & 1: a.e(f"v_and_b32 {v(cs)}, {s(sHi)}, {v(C)}")
                else:     a.e(f"v_lshlrev_b32 {v(cs)}, 16, {v(C)}")
                if not f32: a.e(f"v_mul_f32 {v(cs)}, {s(sS)}, {v(cs)}")
                a.e(f"v_and_b32 {v(x+3)}, {s(sHi)}, {v(x+1)}")
                a.e(f"v_lshlrev_b32 {v(x+2)}, 16, {v(x+1)}")
                a.e(f"v_and_b32 {v(x+1)}, {s(sHi)}, {v(x)}")
                a.e(f"v_lshlrev_b32 {v(x)}, 16, {v(x)}")
                for i in range(4): a.e(f"v_mul_f32 {v(x+i)}, {v(cs)}, {v(x+i)}")
                if not f32:
                    for i in range(4): a.e(f"v_cvt_rpi_i32_f32 {v(x+i)}, {v(x+i)}")
                a.e(f"v_mad_u32_u16 {v(ao)}, {v(R+j)}, 8, 0 op_sel:[1,0,0,0]")
            for j in range(4):
                x = V(r, j); ao = vT + 12 + j
                if j: a.e(f"s_mov_b64 exec, {s(MK(b,r,j),2)}")
                if not f32:
                    a.e(f"ds_add_rtn_u64 {v(x,2)}, {v(ao)}, {v(x,2)}")
                    a.e(f"ds_add_rtn_u64 {v(x+2,2)}, {v(ao)}, {v(x+2,2)} offset:{ACC1}")
                else:
                    a.e(f"ds_add_f32 {v(ao)}, {v(x)}")
                    a.e(f"ds_add_f32 {v(ao)}, {v(x+1)} offset:4")
                    a.e(f"ds_add_f32 {v(ao)}, {v(x+2)} offset:{ACC1}")
                    a.e(f"ds_add_f32 {v(ao)}, {v(x+3)} offset:{ACC1+4}")
        rows(b, body)

    build_map(0, 0)
    a.e("s_waitcnt lgkmcnt(0)")
    a.e("s_barrier")
    load_records(0, 0)
    build_map(1, 1)
    for sl in range(NS):
        b = sl & 1
        a.e("s_waitcnt vmcnt(0) lgkmcnt(0)")
        if sl > 0: check(1 - b)
        a.e("s_barrier")
        gather(b)
        a.e("s_waitcnt lgkmcnt(0)")
        a.e("s_barrier")
        if sl + 1 < NS:
            fill(sl + 1)
            load_records(sl + 1, 1 - b)
        if sl + 2 < NS:
            build_map(sl + 2, b)
        accumulate(b)
    a.e("s_waitcnt lgkmcnt(0)")
    check((NS - 1) & 1)
    a.e(f"v_mov_b32 {v(vT)}, 0x40000000")
    a.e(f"v_cmp_le_i32 vcc, {v(vT)}, {v(vMax)}")
    a.e(f"v_sub_u32 {v(vT)}, 0, {v(vT)}")
    a.e(f"v_cmp_gt_i32 s[8:9], {v(vT)}, {v(vMin)}")
    a.e("s_or_b64 vcc, vcc, s[8:9]")
    a.e(f"v_mov_b32 {v(vT+1)}, {MISC + 1024}")
    a.e(f"v_mov_b32 {v(vT+2)}, 0")
    a.e(f"s_cmp_lg_u32 {s(sW)}, 0")
    a.e("s_cbranch_scc1 k2_flag1")
    a.e(f"ds_write_b32 {v(vT+1)}, {v(vT+2)}")
    a.e("s_waitcnt lgkmcnt(0)")
    a.label("k2_flag1")
    a.e("s_barrier")
    a.e("s_cbranch_vccz k2_flag2")
    a.e(f"v_mov_b32 {v(vT+2)}, 1")
    a.e(f"ds_write_b32 {v(vT+1)}, {v(vT+2)}")
    a.e("s_waitcnt lgkmcnt(0)")
    a.label("k2_flag2")
    a.e("s_barrier")
    a.e(f"ds_read_b32 {v(vT+2)}, {v(vT+1)}")
    a.e("s_waitcnt lgkmcnt(0)")
    a.e(f"v_readfirstlane_b32 {s(sT)}, {v(vT+2)}")
    a.e("s_nop 3")
    a.e(f"s_cmp_lg_u32 {s(sT)}, 0")
    a.e("s_cbranch_scc1 k2_slow")
    a.label("k2_epi")
    a.e(f"v_lshlrev_b32 {v(vT)}, 3, v0")
    for i in range(5):
        x = 56 + 4 * i
        a.e(f"ds_read_b64 {v(x,2)}, {v(vT)} offset:{ACC0 + i*8192}")
        a.e(f"ds_read_b64 {v(x+2,2)}, {v(vT)} offset:{(ACC1 + i*8192) if ACC1 + i*8192 < 65536 else 0}" if ACC1 + i*8192 < 65536 else "")
    a.e(f"v_add_u32 {v(vT+1)}, {ACC1 + 4*8192}, {v(vT)}")
    a.e(f"ds_read_b64 {v(56+16+2,2)}, {v(vT+1)}")
    a.e("s_waitcnt lgkmcnt(0)")
    a.e("s_cmp_lg_u32 s89, 0")
    a.e("s_cbranch_scc1 k2_epi_st")
    for i in range(5):
        x = 56 + 4 * i
        for k in range(4):
            a.e(f"v_cvt_f32_i32 {v(x+k)}, {v(x+k)}")
        for k in range(4):
            a.e(f"v_mul_f32 {v(x+k)}, {s(sInv)}, {v(x+k)}")
    a.label("k2_epi_st")
    for i in range(5):
        a.e(f"s_mov_b32 {s(sT)}, {i*16384}")
        a.e(f"buffer_store_dwordx4 {v(56+4*i,4)}, v1, s[36:39], {s(sT)} offen")
    a.e("s_branch k2_end")

    a.label("k2_slow")
    a.e("s_mov_b32 s89, 1")
    a.e("s_waitcnt vmcnt(0) lgkmcnt(0)")
    a.e("s_barrier")
    for i in range(4): a.e(f"v_mov_b32 {v(vT+4+i)}, 0")
    for i in range(4):
        a.e(f"ds_write_b128 v1, {v(vT+4,4)} offset:{i*16384}")
    a.e(f"v_add_u32 {v(vT+2)}, 0x10000, v1")
    a.e("v_cmp_gt_u32 vcc, 904, v0")
    a.e("s_and_saveexec_b64 s[8:9], vcc")
    a.e(f"ds_write_b128 {v(vT+2)}, {v(vT+4,4)}")
    a.e("s_mov_b64 exec, s[8:9]")
    for sl in range(NS):
        Lw = a.newlabel("k2_sw"); Le = a.newlabel("k2_se")
        a.e("s_waitcnt vmcnt(0) lgkmcnt(0)")
        a.e("s_barrier")
        fill(sl)
        a.e("s_mov_b32 s10, 0")
        a.label(Lw)
        a.e(f"s_cmp_ge_u32 s10, {s(sGt+sl)}")
        a.e(f"s_cbranch_scc1 {Le}")
        cnt, gi, ent, ad, rem = vT, vT+1, vT+2, vT+3, vT+4
        L = a.newlabel("k2_smap"); Ld = a.newlabel("k2_smapd"); Lk = a.newlabel("k2_smapk")
        a.e(f"v_lshrrev_b32 {v(cnt)}, 14, {v(vE+sl)}")
        a.e(f"v_and_b32 {v(ent)}, 0x3fff, {v(vE+sl)}")
        a.e(f"v_add_u32 {v(ent)}, {v(ent)}, {v(vSub)}")
        a.e(f"v_mad_u32_u24 {v(ent)}, {v(ent)}, 24, {v(vC)}")
        a.e(f"v_lshlrev_b32 {v(rem)}, 2, {v(vSub)}")
        a.e(f"v_sub_u32 {v(rem)}, {v(cnt)}, {v(rem)}")
        a.e(f"v_add_u32 {v(ad)}, {v(vP+sl)}, {v(vSub)}")
        a.e(f"v_subrev_u32 {v(ad)}, s10, {v(ad)}")
        a.label(L)
        a.e(f"v_cmpx_lt_i32 vcc, 0, {v(rem)}")
        a.e(f"s_cbranch_execz {Ld}")
        a.e(f"s_mov_b64 s[12:13], exec")
        a.e(f"v_min_u32 {v(gi)}, 4, {v(rem)}")
        a.e(f"v_add3_u32 {v(gi)}, {v(gi)}, {v(ent)}, -1")
        a.e(f"v_lshlrev_b32 {v(vT+5)}, 2, {v(ad)}")
        a.e(f"v_add_u32 {v(vT+5)}, {MAP[0]}, {v(vT+5)}")
        a.e(f"v_mov_b32 {v(vT+6)}, {CAP}")
        a.e(f"v_cmpx_lt_u32 vcc, {v(ad)}, {v(vT+6)}")
        a.e(f"ds_write_b32 {v(vT+5)}, {v(gi)}")
        a.e(f"s_mov_b64 exec, s[12:13]")
        a.e(f"v_add_u32 {v(ent)}, 96, {v(ent)}")
        a.e(f"v_add_u32 {v(ad)}, 4, {v(ad)}")
        a.e(f"v_add_u32 {v(rem)}, -16, {v(rem)}")
        a.e(f"s_branch {L}")
        a.label(Ld)
        a.e("s_mov_b64 exec, -1")
        a.e("s_waitcnt vmcnt(0) lgkmcnt(0)")
        a.e("s_barrier")
        a.e(f"s_mov_b32 s11, {s(sGt+sl)}")
        a.e(f"s_sub_u32 {s(sGt+sl)}, {s(sGt+sl)}, s10")
        load_records(sl, 0)
        a.e(f"s_mov_b32 {s(sGt+sl)}, s11")
        a.e("s_waitcnt vmcnt(0) lgkmcnt(0)")
        gather(0)
        a.e("s_waitcnt lgkmcnt(0)")
        accumulate(0, f32=True)
        a.e("s_waitcnt lgkmcnt(0)")
        a.e("s_barrier")
        a.e(f"s_add_u32 s10, s10, {CAP}")
        a.e(f"s_branch {Lw}")
        a.label(Le)
    a.e("s_waitcnt vmcnt(0) lgkmcnt(0)")
    a.e("s_barrier")
    a.e("s_branch k2_epi")
    a.label("k2_end")
    a.e("s_endpgm")
    return LDS2

def bf16_round_pair(a, x, y, hi):
    a.e(f"v_cvt_pk_bf16_f32 {v(x)}, {v(x)}, {v(y)}")
    a.e(f"v_and_b32 {v(y)}, {s(hi)}, {v(x)}")
    a.e(f"v_lshlrev_b32 {v(x)}, 16, {v(x)}")

def gen_k3(a):
    a.raw(".p2align 8")
    a.raw(".type k3_kernel,@function")
    a.label("k3_kernel")
    a.e("s_cmp_ge_u32 s2, 1250")
    a.e("s_cbranch_scc1 k3_end")
    a.e("s_load_dwordx2 s[4:5], s[0:1], 0")
    a.e("s_load_dwordx2 s[6:7], s[0:1], 24")
    a.e("s_load_dwordx2 s[8:9], s[0:1], 40")
    a.e("s_load_dwordx4 s[12:15], s[0:1], 56")
    a.e("s_load_dwordx4 s[16:19], s[0:1], 72")
    a.e("s_load_dwordx2 s[10:11], s[0:1], 88")
    a.e("s_load_dwordx2 s[20:21], s[0:1], 104")
    a.e("s_lshl_b32 s3, s2, 8")
    a.e("v_add_u32 v0, s3, v0")
    a.e("v_lshlrev_b32 v1, 4, v0")
    a.e("v_lshlrev_b32 v2, 3, v0")
    a.e("v_lshlrev_b32 v3, 1, v0")
    a.e("s_waitcnt lgkmcnt(0)")
    srd(a, 24, 20, 21, off_imm=G.OFF_PART, num=4*G.PARTSTR)
    srd(a, 28, 4, 5, num=G.E_*8)
    srd(a, 32, 6, 7, num=G.E_*2)
    srd(a, 36, 10, 11, num=G.E_*8)
    for q in range(4):
        a.e(f"s_mov_b32 s3, {q*G.PARTSTR}")
        a.e(f"buffer_load_dwordx4 {v(4+4*q,4)}, v1, s[24:27], s3 offen")
    a.e("buffer_load_dwordx2 v[20:21], v2, s[28:31], 0 offen")
    a.e("buffer_load_ushort v22, v3, s[32:35], 0 offen")
    a.e("s_load_dwordx4 s[40:43], s[8:9], 0")
    a.e("s_load_dwordx16 s[44:59], s[12:13], 0")
    a.e("s_load_dwordx16 s[60:75], s[14:15], 0")
    a.e("s_load_dwordx8 s[76:83], s[16:17], 0")
    a.e("s_load_dwordx8 s[84:91], s[18:19], 0")
    a.e("s_mov_b32 s22, 0xffff0000")
    hi = 22
    a.e("s_waitcnt lgkmcnt(0)")
    a.e("s_waitcnt vmcnt(0)")
    a.e("v_lshlrev_b32 v22, 16, v22")
    def sval(base, idx):
        r = base + idx // 2
        if idx & 1: a.e(f"s_and_b32 s92, {s(r)}, s22")
        else: a.e(f"s_lshl_b32 s92, {s(r)}, 16")
        return "s92"
    for k in range(8):
        w = sval(40, k)
        a.e(f"v_subrev_f32 {v(24+k)}, {w}, v22")
    for k in range(0, 8, 2): bf16_round_pair(a, 24+k, 25+k, hi)
    for k in range(8): a.e(f"v_mul_f32 {v(24+k)}, {v(24+k)}, {v(24+k)}")
    for k in range(0, 8, 2): bf16_round_pair(a, 24+k, 25+k, hi)
    a.e("s_mov_b32 s93, 0xc1200000")
    for k in range(8): a.e(f"v_mul_f32 {v(24+k)}, s93, {v(24+k)}")
    for k in range(0, 8, 2): bf16_round_pair(a, 24+k, 25+k, hi)
    a.e("s_mov_b32 s93, 0x3fb8aa3b")
    for k in range(8): a.e(f"v_mul_f32 {v(24+k)}, s93, {v(24+k)}")
    for k in range(8): a.e(f"v_exp_f32 {v(24+k)}, {v(24+k)}")
    a.e("s_nop 0")
    for k in range(0, 8, 2): bf16_round_pair(a, 24+k, 25+k, hi)
    for dst, base in ((32, 60), (36, 44)):
        for k in range(8):
            for c in range(4):
                w = sval(base, k*4 + c)
                if k == 0: a.e(f"v_mul_f32 {v(dst+c)}, {w}, {v(24)}")
                else: a.e(f"v_fmac_f32 {v(dst+c)}, {w}, {v(24+k)}")
    for c in range(4):
        a.e(f"v_add_f32 {v(4+c)}, {v(4+c)}, {v(8+c)}")
        a.e(f"v_add_f32 {v(12+c)}, {v(12+c)}, {v(16+c)}")
    for c in range(4):
        a.e(f"v_add_f32 {v(4+c)}, {v(4+c)}, {v(12+c)}")
    for k in range(4):
        for c in range(4):
            w = sval(76, k*4 + c)
            if k == 0: a.e(f"v_mul_f32 {v(8+c)}, {w}, {v(4)}")
            else: a.e(f"v_fmac_f32 {v(8+c)}, {w}, {v(4+k)}")
    for c in range(4): a.e(f"v_mul_f32 {v(8+c)}, {v(8+c)}, {v(32+c)}")
    bf16_round_pair(a, 8, 9, hi); bf16_round_pair(a, 10, 11, hi)
    for k in range(4):
        for c in range(4):
            w = sval(84, k*4 + c)
            if k == 0: a.e(f"v_mul_f32 {v(12+c)}, {w}, {v(8)}")
            else: a.e(f"v_fmac_f32 {v(12+c)}, {w}, {v(8+k)}")
    bf16_round_pair(a, 12, 13, hi); bf16_round_pair(a, 14, 15, hi)
    bf16_round_pair(a, 36, 37, hi); bf16_round_pair(a, 38, 39, hi)
    for c in range(4): a.e(f"v_mul_f32 {v(12+c)}, {v(12+c)}, {v(36+c)}")
    bf16_round_pair(a, 12, 13, hi); bf16_round_pair(a, 14, 15, hi)
    a.e("v_lshlrev_b32 v4, 16, v20")
    a.e("v_and_b32 v5, s22, v20")
    a.e("v_lshlrev_b32 v6, 16, v21")
    a.e("v_and_b32 v7, s22, v21")
    for c in range(4): a.e(f"v_add_f32 {v(4+c)}, {v(4+c)}, {v(12+c)}")
    a.e("v_cvt_pk_bf16_f32 v4, v4, v5")
    a.e("v_cvt_pk_bf16_f32 v5, v6, v7")
    a.e("buffer_store_dwordx2 v[4:5], v2, s[36:39], 0 offen")
    a.label("k3_end")
    a.e("s_endpgm")
```

```python
import sys
from asmlib import Asm, v, s

E_ = 320000; T_ = 10240000
NCH = 256; CH = 40000
A_ = 5000; B_ = 8000; NO = 64; NSL = 40; NS = 10
NKEY = NSL * NO
H_ = 24576
RSTRIDE = 2 * H_ * 6
OFF_REC = 0
OFF_TAB = NCH * RSTRIDE
TABSTR = NKEY * 4
OFF_MAX = OFF_TAB + NCH * TABSTR
OFF_PART = OFF_MAX + 4096
PARTSTR = E_ * 16
WS_END = OFF_PART + 4 * PARTSTR

DEPTH = 4
NT_IN = " nt"
NT_REC_ST = ""
NT_REC_LD = ""

def srd(a, d, base_lo, base_hi, off_sreg=None, off_imm=0, num=None, tmp=None):
    if off_sreg is not None:
        a.e(f"s_add_u32 {s(d)}, {s(base_lo)}, {s(off_sreg)}")
        a.e(f"s_addc_u32 {s(d+1)}, {s(base_hi)}, 0")
        if off_imm:
            a.e(f"s_add_u32 {s(d)}, {s(d)}, {off_imm}")
            a.e(f"s_addc_u32 {s(d+1)}, {s(d+1)}, 0")
    elif off_imm:
        a.e(f"s_add_u32 {s(d)}, {s(base_lo)}, {off_imm}")
        a.e(f"s_addc_u32 {s(d+1)}, {s(base_hi)}, 0")
    else:
        a.e(f"s_mov_b32 {s(d)}, {s(base_lo)}")
        a.e(f"s_mov_b32 {s(d+1)}, {s(base_hi)}")
    a.e(f"s_and_b32 {s(d+1)}, {s(d+1)}, 0xffff")
    a.e(f"s_mov_b32 {s(d+2)}, {num}")
    a.e(f"s_mov_b32 {s(d+3)}, 0x20000")

def dpp_scan_incl(a, regs, full=True):
    steps = ["row_shr:1 row_mask:0xf bank_mask:0xf", "row_shr:2 row_mask:0xf bank_mask:0xf",
             "row_shr:4 row_mask:0xf bank_mask:0xf", "row_shr:8 row_mask:0xf bank_mask:0xf"]
    if full:
        steps += ["row_bcast:15 row_mask:0xa bank_mask:0xf", "row_bcast:31 row_mask:0xc bank_mask:0xf"]
    pad = max(0, 3 - len(regs))
    a.e("s_nop 1")
    for st in steps:
        for r in regs:
            a.e(f"v_add_u32_dpp {v(r)}, {v(r)}, {v(r)} {st}")
        if pad: a.e(f"s_nop {pad-1}" if pad > 0 else "")
    a.e("s_nop 1")

PROF = False
OFF_PROF = 100 << 20
def stamp(a, i, base=76):
    if not PROF: return
    a.e(f"s_memtime s[{base+20}:{base+21}]")
    a.e("s_waitcnt lgkmcnt(0)")
    a.e(f"s_mov_b32 s{base+i}, s{base+20}")
def stamp_rt(a, i, base=76):
    if not PROF: return
    a.e(f"s_memrealtime s[{base+20}:{base+21}]")
    a.e("s_waitcnt lgkmcnt(0)")
    a.e(f"s_mov_b32 s{base+i}, s{base+20}")
def stamp_out(a, n, wslo, wshi, kidx, base=76, srdreg=4, vt=10):
    if not PROF: return
    L = a.newlabel("prof")
    a.e(f"v_readfirstlane_b32 s{base+22}, v0")
    a.e("s_nop 3")
    a.e(f"s_lshr_b32 s{base+22}, s{base+22}, 6")
    a.e(f"s_cmp_lg_u32 s{base+22}, 0")
    a.e(f"s_cbranch_scc1 {L}")
    a.e(f"s_lshl_b32 s{base+22}, s2, 8")
    srd(a, srdreg, wslo, wshi, off_sreg=base+22, off_imm=OFF_PROF + kidx*(1<<20), num=256)
    for i in range(n):
        a.e(f"v_mov_b32 v{vt}, s{base+i}")
        a.e(f"v_mov_b32 v{vt+1}, {4*i}")
        a.e(f"buffer_store_dword v{vt}, v{vt+1}, s[{srdreg}:{srdreg+3}], 0 offen")
        a.e("s_nop 1")
    a.label(L)

def gen_k1(a):
    HIST = 0; MISC = 10240; M_WT = MISC; M_MAX = MISC + 64 * 4 // 4 + 64
    M_MAX = MISC + 128
    STAGE = 10752
    LDS = STAGE + H_ * 6
    VI = 8; VO = 48; VA = 88; VT = 108
    sK8, sK5, sN8, sN5, sHi, sLo, sPt, sW = 52, 53, 54, 55, 56, 57, 58, 49
    sFreq = 16
    a.raw(".p2align 8")
    a.raw(".type k1_kernel,@function")
    a.label("k1_kernel")
    a.e("s_cmp_ge_u32 s2, 256")
    a.e("s_cbranch_scc1 k1_end")
    stamp_rt(a, 0); stamp(a, 1)
    a.e("s_load_dwordx4 s[4:7], s[0:1], 0")
    a.e("s_load_dwordx2 s[8:9], s[0:1], 16")
    a.e("s_load_dwordx2 s[10:11], s[0:1], 32")
    a.e("s_load_dwordx2 s[12:13], s[0:1], 48")
    a.e("s_load_dwordx2 s[14:15], s[0:1], 104")
    a.e("v_lshlrev_b32 v1, 4, v0")
    a.e("v_lshlrev_b32 v2, 3, v0")
    a.e("v_add_u32 v4, 0x10000, v1")
    a.e("v_add_u32 v5, 0x20000, v1")
    for i in range(4): a.e(f"v_mov_b32 {v(VT+i)}, 0")
    a.e(f"ds_write_b128 v1, {v(VT,4)}")
    a.e(f"v_readfirstlane_b32 {s(sW)}, v0")
    a.e("s_waitcnt lgkmcnt(0)")
    a.e("s_barrier")
    a.e("s_load_dword s16, s[12:13], 0")
    a.e(f"s_lshr_b32 {s(sW)}, {s(sW)}, 6")
    a.e(f"s_mul_i32 s17, s2, {CH*4}")
    srd(a, 20, 6, 7, off_sreg=17, num=CH*4)
    srd(a, 24, 8, 9, off_sreg=17, num=CH*4)
    a.e(f"s_mul_i32 s17, s2, {CH*2}")
    srd(a, 28, 10, 11, off_sreg=17, num=CH*2)
    a.e(f"s_mul_i32 s17, s2, 10000")
    srd(a, 32, 4, 5, off_sreg=17, num=10000)
    a.e(f"buffer_load_dwordx4 {v(VT+4,4)}, v1, s[32:35], 0 offen")
    a.e("v_cmp_gt_u32 vcc, 1000, v0")
    a.e("s_and_saveexec_b64 s[60:61], vcc")
    a.e("s_mov_b64 s[50:51], exec")
    def issue_quad(k):
        a.e(f"s_mov_b32 s48, {k*16000}")
        a.e(f"buffer_load_dwordx4 {v(VI+4*k,4)}, v1, s[20:23], s48 offen{NT_IN}")
        a.e(f"buffer_load_dwordx4 {v(VO+4*k,4)}, v1, s[24:27], s48 offen{NT_IN}")
        a.e(f"s_mov_b32 s48, {k*8000}")
        a.e(f"buffer_load_dwordx2 {v(VA+2*k,2)}, v2, s[28:31], s48 offen{NT_IN}")
    for k in range(DEPTH): issue_quad(k)
    a.e("s_mov_b64 exec, -1")
    a.e(f"s_mul_i32 s17, s2, {RSTRIDE}")
    srd(a, 36, 14, 15, off_sreg=17, off_imm=OFF_REC, num=RSTRIDE)
    a.e(f"s_mul_i32 s17, s2, {TABSTR}")
    srd(a, 40, 14, 15, off_sreg=17, off_imm=OFF_TAB, num=TABSTR)
    a.e(f"s_lshl_b32 s17, s2, 4")
    srd(a, 44, 14, 15, off_sreg=17, off_imm=OFF_MAX, num=16)
    a.e(f"s_mov_b32 {s(sK8)}, {-(-(1<<32)//8000)}")
    a.e(f"s_mov_b32 {s(sK5)}, {-(-(1<<32)//5000)}")
    a.e(f"s_mov_b32 {s(sN8)}, -8000")
    a.e(f"s_mov_b32 {s(sN5)}, -5000")
    a.e(f"s_mov_b32 {s(sHi)}, 0xffff0000")
    a.e(f"s_mov_b32 {s(sLo)}, 0xffff")
    a.e("v_mov_b32 v3, 1")
    a.e("s_waitcnt lgkmcnt(0)")
    a.e(f"s_lshl_b32 {s(sFreq)}, {s(sFreq)}, 16")
    a.e(f"s_cmp_ge_u32 {s(sW)}, 10")
    a.e("s_cbranch_scc1 k1_nomax")
    a.e(f"s_waitcnt vmcnt({3*DEPTH})")
    a.e("s_mov_b32 s17, 0x7fff7fff")
    for i in range(4): a.e(f"v_and_b32 {v(VT+4+i)}, s17, {v(VT+4+i)}")
    a.e(f"v_pk_max_u16 {v(VT+4)}, {v(VT+4)}, {v(VT+6)}")
    a.e(f"v_pk_max_u16 {v(VT+5)}, {v(VT+5)}, {v(VT+7)}")
    a.e(f"v_and_b32 {v(VT+8)}, {s(sLo)}, {v(VT+4)}")
    a.e(f"v_lshrrev_b32 {v(VT+9)}, 16, {v(VT+4)}")
    a.e(f"v_and_b32 {v(VT+10)}, {s(sLo)}, {v(VT+5)}")
    a.e(f"v_lshrrev_b32 {v(VT+11)}, 16, {v(VT+5)}")
    for st in ["row_shr:1", "row_shr:2", "row_shr:4", "row_shr:8"]:
        a.e("s_nop 1")
        for i in range(4):
            a.e(f"v_max_u32_dpp {v(VT+8+i)}, {v(VT+8+i)}, {v(VT+8+i)} {st} row_mask:0xf bank_mask:0xf")
    a.e(f"v_mov_b32 {v(VT+12)}, {M_MAX}")
    a.e("s_mov_b32 exec_lo, 0x80008000")
    a.e("s_mov_b32 exec_hi, 0x80008000")
    for i in range(4):
        a.e(f"ds_max_u32 {v(VT+12)}, {v(VT+8+i)} offset:{4*i}")
    a.e("s_mov_b64 exec, -1")
    a.label("k1_nomax")
    stamp(a, 2)
    a.e("s_mov_b64 exec, s[50:51]")
    for k in range(10):
        a.e(f"s_waitcnt vmcnt({3*(min(DEPTH, 10-k)-1)})")
        if k + DEPTH < 10: issue_quad(k + DEPTH)
        if k == 1: stamp(a, 3)
        if k == 5: stamp(a, 4)
        if k == 9: stamp(a, 5)
        for pr in range(2):
            t = VT + 10 * (pr & 1)
            an = VA + 2 * k + pr
            for jj in range(2):
                j = 2 * pr + jj
                I = VI + 4 * k + j; O = VO + 4 * k + j
                t0 = t + 2 * jj; t1 = t0 + 1
                a.e(f"v_mul_hi_u32_u24 {v(t0)}, {s(sK8)}, {v(I)}")
                a.e(f"v_mul_hi_u32_u24 {v(t1)}, {s(sK5)}, {v(O)}")
                a.e(f"v_mad_i32_i24 {v(I)}, {v(t0)}, {s(sN8)}, {v(I)}")
                a.e(f"v_mad_i32_i24 {v(O)}, {v(t1)}, {s(sN5)}, {v(O)}")
                a.e(f"v_lshlrev_b32 {v(t1)}, 2, {v(t1)}")
                a.e(f"v_lshl_or_b32 {v(I)}, {v(O)}, 16, {v(I)}")
                a.e(f"v_lshl_add_u32 {v(O)}, {v(t0)}, 8, {v(t1)}")
                a.e(f"ds_add_u32 {v(O)}, v3")
            c0 = t + 4; c1 = t + 5
            a.e(f"v_lshlrev_b32 {v(c0)}, 16, {v(an)}")
            a.e(f"v_and_b32 {v(c1)}, {s(sHi)}, {v(an)}")
            a.e(f"v_mul_f32 {v(c0)}, {s(sFreq)}, {v(c0)}")
            a.e(f"v_mul_f32 {v(c1)}, {s(sFreq)}, {v(c1)}")
            a.e(f"v_cvt_pk_bf16_f32 {v(c0)}, {v(c0)}, {v(c1)}")
            a.e(f"v_and_b32 {v(c1)}, {s(sHi)}, {v(c0)}")
            a.e(f"v_lshlrev_b32 {v(c0)}, 16, {v(c0)}")
            a.e(f"v_mul_f32 {v(c0)}, 0.15915494, {v(c0)}")
            a.e(f"v_mul_f32 {v(c1)}, 0.15915494, {v(c1)}")
            a.e(f"v_fract_f32 {v(c0)}, {v(c0)}")
            a.e(f"v_fract_f32 {v(c1)}, {v(c1)}")
            a.e(f"v_cos_f32 {v(c0)}, {v(c0)}")
            a.e(f"v_cos_f32 {v(c1)}, {v(c1)}")
            a.e("s_nop 0")
            a.e(f"v_cvt_pk_bf16_f32 {v(c0)}, {v(c0)}, {v(c1)}")
            O0 = VO + 4 * k + 2 * pr
            a.e(f"v_lshl_or_b32 {v(O0)}, {v(c0)}, 16, {v(O0)}")
            a.e(f"v_and_or_b32 {v(O0+1)}, {v(c0)}, {s(sHi)}, {v(O0+1)}")
    a.e("s_mov_b64 exec, -1")
    a.e("s_waitcnt lgkmcnt(0)")
    a.e("s_barrier")
    stamp(a, 6)
    c = VT; p = VT + 4; e2 = VT + 8; e3 = VT + 9; tot = VT + 10; x = VT + 11; tmp = VT + 12
    a.e(f"s_cmp_ge_u32 {s(sW)}, 10")
    a.e("s_cbranch_scc1 k1_scan1_skip")
    a.e(f"ds_read_b128 {v(c,4)}, v1")
    a.e("s_waitcnt lgkmcnt(0)")
    for i in range(4):
        a.e(f"v_add_u32 {v(p+i)}, 3, {v(c+i)}")
    for i in range(4):
        a.e(f"v_and_b32 {v(p+i)}, -4, {v(p+i)}")
    a.e(f"v_add_u32 {v(e2)}, {v(p)}, {v(p+1)}")
    a.e(f"v_add_u32 {v(e3)}, {v(e2)}, {v(p+2)}")
    a.e(f"v_add_u32 {v(tot)}, {v(e3)}, {v(p+3)}")
    a.e(f"v_mov_b32 {v(x)}, {v(tot)}")
    dpp_scan_incl(a, [x])
    a.e(f"s_lshl_b32 s17, {s(sW)}, 2")
    a.e(f"s_add_u32 s17, s17, {M_WT}")
    a.e(f"v_mov_b32 {v(tmp)}, s17")
    a.e("s_mov_b32 exec_lo, 0")
    a.e("s_mov_b32 exec_hi, 0x80000000")
    a.e(f"ds_write_b32 {v(tmp)}, {v(x)}")
    a.e("s_mov_b64 exec, -1")
    a.e("s_waitcnt lgkmcnt(0)")
    a.label("k1_scan1_skip")
    a.e("s_barrier")
    w = VT + 13; w2 = VT + 14
    a.e(f"v_and_b32 {v(tmp)}, 15, v0")
    a.e(f"v_lshlrev_b32 {v(tmp)}, 2, {v(tmp)}")
    a.e(f"ds_read_b32 {v(w)}, {v(tmp)} offset:{M_WT}")
    a.e("s_waitcnt lgkmcnt(0)")
    a.e(f"v_mov_b32 {v(w2)}, {v(w)}")
    dpp_scan_incl(a, [w2], full=False)
    a.e(f"v_sub_u32 {v(w)}, {v(w2)}, {v(w)}")
    a.e("s_nop 1")
    a.e(f"v_readlane_b32 {s(sPt)}, {v(w2)}, 15")
    a.e(f"v_readlane_b32 s59, {v(w)}, {s(sW)}")
    a.e(f"s_cmp_gt_u32 {s(sW)}, 10")
    a.e("s_cbranch_scc1 k1_scan2_done")
    a.e(f"s_cmp_eq_u32 {s(sW)}, 10")
    a.e("s_cbranch_scc1 k1_maxout")
    a.e(f"v_sub_u32 {v(x)}, {v(x)}, {v(tot)}")
    a.e(f"v_add_u32 {v(x)}, s59, {v(x)}")
    a.e(f"v_add_u32 {v(e3)}, {v(x)}, {v(e3)}")
    a.e(f"v_add_u32 {v(e2)}, {v(x)}, {v(e2)}")
    a.e(f"v_add_u32 {v(p+1)}, {v(x)}, {v(p)}")
    a.e(f"v_mov_b32 {v(p)}, {v(x)}")
    a.e(f"v_mov_b32 {v(p+2)}, {v(e2)}")
    a.e(f"v_mov_b32 {v(p+3)}, {v(e3)}")
    a.e(f"ds_write_b128 v1, {v(p,4)}")
    for i in range(4):
        a.e(f"v_lshrrev_b32 {v(VT+16+i)}, 2, {v(p+i)}")
        a.e(f"v_lshl_or_b32 {v(VT+16+i)}, {v(c+i)}, 14, {v(VT+16+i)}")
    a.e("s_branch k1_scan2_done")
    a.label("k1_maxout")
    a.e(f"v_and_b32 {v(tmp)}, 63, v0")
    a.e(f"v_lshlrev_b32 {v(tmp)}, 2, {v(tmp)}")
    a.e(f"ds_read_b32 {v(w)}, {v(tmp)} offset:{M_MAX}")
    a.e("s_waitcnt lgkmcnt(0)")
    a.e(f"buffer_store_dword {v(w)}, {v(tmp)}, s[44:47], 0 offen")
    a.label("k1_scan2_done")
    a.e("s_waitcnt lgkmcnt(0)")
    a.e("s_barrier")
    stamp(a, 7)
    a.e(f"s_cmp_ge_u32 {s(sW)}, 10")
    a.e("s_cbranch_scc1 k1_notab")
    a.e(f"v_and_b32 v6, 63, v0")
    a.e(f"v_mul_u32_u24 v6, 160, v6")
    a.e(f"s_lshl_b32 s17, {s(sW)}, 2")
    for i in range(4):
        a.e(f"buffer_store_dword {v(VT+16+i)}, v6, s[40:43], s17 offen offset:{40*i}")
    a.label("k1_notab")
    a.e("s_mov_b64 exec, s[50:51]")
    NB = 10
    for b0 in range(0, 40, NB):
        tb = (VA if (b0 // NB) % 2 == 0 else VT)
        for i in range(NB):
            a.e(f"v_and_b32 {v(tb+i)}, {s(sLo)}, {v(VO+b0+i)}")
            a.e(f"ds_add_rtn_u32 {v(tb+i)}, {v(tb+i)}, v3")
        if b0 > 0:
            tp = (VA if ((b0 - NB) // NB) % 2 == 0 else VT)
            a.e(f"s_waitcnt lgkmcnt({NB})")
            for i in range(NB):
                a.e(f"v_bfi_b32 {v(VO+b0-NB+i)}, {s(sLo)}, {v(tp+i)}, {v(VO+b0-NB+i)}")
    b0 = 40 - NB
    tp = (VA if (b0 // NB) % 2 == 0 else VT)
    a.e("s_waitcnt lgkmcnt(0)")
    for i in range(NB):
        a.e(f"v_bfi_b32 {v(VO+b0+i)}, {s(sLo)}, {v(tp+i)}, {v(VO+b0+i)}")
    stamp(a, 8)
    a.e(f"s_mov_b32 s62, {H_}")
    a.e(f"s_mov_b32 s64, {6*H_}")
    for r in range(2):
        a.e(f"v_mov_b32 v7, {(-6*H_*r) & 0xffffffff:#x}")
        for i in range(40):
            t = VA + 4 * (i % 5)
            B = VO + i; A = VI + i
            a.e(f"v_mad_u32_u16 {v(t)}, {v(B)}, 6, v7")
            a.e(f"v_and_b32 {v(t+1)}, 3, {v(B)}")
            a.e(f"v_mad_i32_i24 {v(t+2)}, {v(t+1)}, -2, {v(t)}")
            a.e(f"v_mad_i32_i24 {v(t+3)}, {v(t+1)}, -4, {v(t)}")
            a.e(f"v_cmpx_gt_u32 vcc, s64, {v(t)}")
            a.e(f"ds_write_b32 {v(t+2)}, {v(A)} offset:{STAGE}")
            a.e(f"ds_write_b16_d16_hi {v(t+3)}, {v(B)} offset:{STAGE+16}")
            a.e("s_mov_b64 exec, s[50:51]")
        a.e("s_mov_b64 exec, -1")
        if r == 0:
            a.e(f"s_min_u32 s63, {s(sPt)}, s62")
        else:
            a.e(f"s_min_u32 s63, {s(sPt)}, s62")
            a.e(f"s_sub_u32 s63, {s(sPt)}, s63")
        a.e("s_mul_i32 s63, s63, 6")
        a.e("s_add_u32 s63, s63, 15")
        a.e("s_lshr_b32 s63, s63, 4")
        a.e("s_lshl_b32 s38, s63, 4")
        a.e(f"s_add_u32 s38, s38, {r*H_*6}")
        a.e("s_waitcnt lgkmcnt(0)")
        a.e("s_barrier")
        stamp(a, 9 + 2*r)
        Q = [VA + 4 * i for i in range(5)] + [VT + 4 * i for i in range(4)]
        Lr = f"k1_rd_done{r}"; Ls = f"k1_st_done{r}"
        for i in range(9):
            off = STAGE + i * 16384
            areg = 1 if off < 65536 else (4 if off < 131072 else 5)
            a.e(f"s_cmp_gt_u32 s63, {i*1024}")
            a.e(f"s_cbranch_scc0 {Lr}")
            a.e(f"ds_read_b128 {v(Q[i],4)}, {v(areg)} offset:{off & 0xffff}")
        a.label(Lr)
        a.e("s_waitcnt lgkmcnt(0)")
        if r == 0:
            a.e("s_barrier")
        for i in range(9):
            a.e(f"s_cmp_gt_u32 s63, {i*1024}")
            a.e(f"s_cbranch_scc0 {Ls}")
            a.e(f"s_mov_b32 s48, {r*H_*6 + i*16384}")
            a.e(f"buffer_store_dwordx4 {v(Q[i],4)}, v1, s[36:39], s48 offen{NT_REC_ST}")
        a.label(Ls)
        stamp(a, 10 + 2*r)
        if r == 0:
            a.e("s_mov_b64 exec, s[50:51]")
            a.e("s_nop 1")
    if PROF:
        a.e("s_waitcnt vmcnt(0)")
        stamp(a, 13); stamp_rt(a, 14)
        stamp_out(a, 15, 14, 15, 0)
    a.label("k1_end")
    a.e("s_endpgm")
    return LDS

def kd(name, vgpr, sgpr):
    return f""".p2align 6
.amdhsa_kernel {name}
  .amdhsa_next_free_vgpr {vgpr}
  .amdhsa_next_free_sgpr {sgpr}
  .amdhsa_accum_offset {(vgpr+3)//4*4}
  .amdhsa_group_segment_fixed_size 0
  .amdhsa_kernarg_size 112
  .amdhsa_user_sgpr_count 2
  .amdhsa_user_sgpr_kernarg_segment_ptr 1
  .amdhsa_system_sgpr_workgroup_id_x 1
  .amdhsa_float_denorm_mode_32 3
  .amdhsa_float_denorm_mode_16_64 3
.end_amdhsa_kernel
"""

HEADER = """; Kernarg layout (112 bytes, ptrs only, base s[0:1]):
"""

def main(out):
    global PROF
    import os
    PROF = bool(os.environ.get("PROF"))
    a = Asm()
    kernels = []
    lds1 = gen_k1(a)
    kernels.append(("k1_kernel", (256, 1024, lds1), 128, 102))
    try:
        from gen23 import gen_k2, gen_k3
        lds2 = gen_k2(a)
        kernels.append(("k2_kernel", (256, 1024, lds2), 128, 100))
        gen_k3(a)
        kernels.append(("k3_kernel", (1250, 256, 0), 64, 100))
    except ImportError:
        pass
    txt = HEADER
    for n, (g, b, l), _, _ in kernels:
        txt += f"; @launch kernel={n} grid=({g},1,1) block=({b},1,1) lds={l}\n"
    txt += '.amdgcn_target "amdgcn-amd-amdhsa--gfx950"\n.text\n'
    for n, _, _, _ in kernels:
        txt += f".globl {n}\n"
    txt += a.text()
    txt += '.section .rodata,"a"\n'
    for n, _, vg, sg in kernels:
        txt += kd(n, vg, sg)
    open(out, "w").write(txt)

if __name__ == "__main__":
    main(sys.argv[1] if len(sys.argv) > 1 else "standalone__molecular_angular_gemnet__graph.s")
```

```python
from asmlib import Asm, v, s
import sys
G = sys.modules.get("__main__") if hasattr(sys.modules.get("__main__"), "OFF_REC") else __import__("gen")
srd, dpp_scan_incl, stamp, stamp_rt, stamp_out = G.srd, G.dpp_scan_incl, G.stamp, G.stamp_rt, G.stamp_out

ACC0 = 0; ACC1 = 40000; SLICE = 80000; MAP = [145536, 145536 + 8192]; MISC = 161920
CAP = 2048
LDS2 = 163840

def gen_k2(a):
    NS = G.NS
    vE = 2; vP = 12; vC = 22; vSub = 23
    def RW(b, r): return 24 + 16 * b + 8 * r
    def V(r, j): return 56 + 16 * r + 4 * j
    vT = 88
    vMax, vMin, vG0, vSl = 104, 105, 106, 107
    vMapW = 108
    def MK(b, r, j): return 40 + 16 * b + 8 * r + 2 * j
    sGt = 72; sS = 82; sInv = 83; sW = 84; sHi = 85; sQ = 86; sO = 87; sJ = 88
    sT = 90
    a.raw(".p2align 8")
    a.raw(".type k2_kernel,@function")
    a.label("k2_kernel")
    a.e("s_cmp_ge_u32 s2, 256")
    a.e("s_cbranch_scc1 k2_end")
    stamp_rt(a, 0); stamp(a, 1)
    G.DBGV = 110
    G.dbg_time(a, 1, 0)
    a.e("s_load_dwordx2 s[4:5], s[0:1], 0")
    a.e("s_load_dwordx2 s[6:7], s[0:1], 104")
    a.e("s_and_b32 s8, s2, 7")
    a.e("s_lshl_b32 s8, s8, 5")
    a.e("s_lshr_b32 s9, s2, 3")
    a.e(f"s_add_u32 {s(sJ)}, s8, s9")
    a.e(f"s_lshr_b32 {s(sQ)}, {s(sJ)}, 6")
    a.e(f"s_and_b32 {s(sO)}, {s(sJ)}, 63")
    a.e("v_lshlrev_b32 v1, 4, v0")
    a.e(f"v_readfirstlane_b32 {s(sW)}, v0")
    a.e(f"v_lshrrev_b32 {v(vC)}, 2, v0")
    a.e(f"v_and_b32 {v(vSub)}, 3, v0")
    a.e(f"s_mov_b32 {s(sHi)}, 0xffff0000")
    a.e(f"s_lshr_b32 {s(sW)}, {s(sW)}, 6")
    a.e("s_waitcnt lgkmcnt(0)")
    srd(a, 20, 4, 5, num=G.E_*8)
    srd(a, 24, 6, 7, off_imm=G.OFF_REC, num=G.NCH*G.RSTRIDE)
    a.e(f"s_mul_i32 s8, {s(sJ)}, 40")
    srd(a, 28, 6, 7, off_sreg=8, off_imm=G.OFF_TAB, num=G.NCH*G.TABSTR - 10200)
    srd(a, 32, 6, 7, off_imm=G.OFF_MAX, num=4096)
    a.e(f"s_mul_i32 s8, {s(sQ)}, {G.PARTSTR}")
    a.e(f"s_mul_i32 s9, {s(sO)}, {G.A_*16}")
    a.e("s_add_u32 s8, s8, s9")
    srd(a, 36, 6, 7, off_sreg=8, off_imm=G.OFF_PART, num=G.A_*16)
    a.e(f"s_mul_i32 s8, {s(sJ)}, 40")
    a.e(f"s_sub_u32 s30, {G.NCH*G.TABSTR}, s8")
    a.e(f"v_mul_u32_u24 {v(vT)}, {G.TABSTR}, {v(vC)}")
    a.e(f"buffer_load_dwordx4 {v(vE,4)}, {v(vT)}, s[28:31], 0 offen")
    a.e(f"buffer_load_dwordx4 {v(vE+4,4)}, {v(vT)}, s[28:31], 0 offen offset:16")
    a.e(f"buffer_load_dwordx2 {v(vE+8,2)}, {v(vT)}, s[28:31], 0 offen offset:32")
    a.e(f"v_and_b32 {v(vT+1)}, 63, v0")
    a.e(f"v_lshlrev_b32 {v(vT+1)}, 6, {v(vT+1)}")
    for i in range(4):
        a.e(f"buffer_load_dwordx4 {v(56+4*i,4)}, {v(vT+1)}, s[32:35], 0 offen offset:{16*i}")
    def fill(sl):
        a.e(f"s_lshl_b32 {s(sT)}, {s(sW)}, 10")
        a.e(f"s_mul_i32 {s(sT+1)}, {s(sQ)}, {G.B_*8}")
        for i in range(4):
            a.e(f"s_add_u32 m0, {s(sT)}, {SLICE + i*16384}")
            a.e(f"s_add_u32 {s(sT+2)}, {s(sT+1)}, {sl*4*G.B_*8 + i*16384}")
            a.e(f"buffer_load_dwordx4 v1, s[20:23], {s(sT+2)} offen lds")
    fill(0)
    a.e(f"v_mul_u32_u24 {v(vC)}, {G.RSTRIDE//8}, {v(vC)}")
    a.e(f"v_lshlrev_b32 {v(vC)}, 3, {v(vC)}")
    for i in range(4): a.e(f"v_mov_b32 {v(vT+4+i)}, 0")
    for i in range(4):
        a.e(f"ds_write_b128 v1, {v(vT+4,4)} offset:{i*16384}")
    a.e(f"v_add_u32 {v(vT+2)}, 0x10000, v1")
    a.e("v_cmp_gt_u32 vcc, 904, v0")
    a.e("s_and_saveexec_b64 s[8:9], vcc")
    a.e(f"ds_write_b128 {v(vT+2)}, {v(vT+4,4)}")
    a.e("s_mov_b64 exec, s[8:9]")
    a.e(f"v_mov_b32 {v(vMax)}, 0")
    a.e(f"v_mov_b32 {v(vMin)}, 0")
    a.e(f"v_mov_b32 {v(vSl)}, {SLICE}")
    a.e(f"v_lshlrev_b32 {v(vG0)}, 2, v0")
    a.e("s_waitcnt vmcnt(4)")
    mx = 56
    t = vT + 8
    a.e(f"v_max3_u32 {v(t)}, {v(mx)}, {v(mx+1)}, {v(mx+2)}")
    for i in range(3, 15, 2):
        a.e(f"v_max3_u32 {v(t)}, {v(t)}, {v(mx+i)}, {v(mx+i+1)}")
    a.e(f"v_max_u32 {v(t)}, {v(t)}, {v(mx+15)}")
    a.e(f"v_mov_b32 {v(t+2)}, 0x7fff")
    for i in range(16):
        a.e(f"v_cmp_eq_u32 vcc, 0, {v(mx+i)}")
        a.e("s_nop 1")
        a.e(f"v_cndmask_b32 {v(mx+i)}, {v(mx+i)}, {v(t+2)}, vcc")
    a.e(f"v_min3_u32 {v(t+1)}, {v(mx)}, {v(mx+1)}, {v(mx+2)}")
    for i in range(3, 15, 2):
        a.e(f"v_min3_u32 {v(t+1)}, {v(t+1)}, {v(mx+i)}, {v(mx+i+1)}")
    a.e(f"v_min_u32 {v(t+1)}, {v(t+1)}, {v(mx+15)}")
    for st in ["row_shr:1 row_mask:0xf", "row_shr:2 row_mask:0xf", "row_shr:4 row_mask:0xf", "row_shr:8 row_mask:0xf", "row_bcast:15 row_mask:0xa", "row_bcast:31 row_mask:0xc"]:
        a.e("s_nop 1")
        a.e(f"v_max_u32_dpp {v(t)}, {v(t)}, {v(t)} {st} bank_mask:0xf")
        a.e(f"v_min_u32_dpp {v(t+1)}, {v(t+1)}, {v(t+1)} {st} bank_mask:0xf")
    a.e("s_nop 1")
    a.e(f"v_readlane_b32 {s(sT)}, {v(t)}, 63")
    a.e(f"v_readlane_b32 {s(sT+1)}, {v(t+1)}, 63")
    a.e("s_nop 3")
    a.e(f"s_mov_b32 {s(sT+3)}, 0")
    a.e(f"s_lshr_b32 {s(sT+2)}, {s(sT)}, 7")
    a.e(f"s_lshr_b32 {s(sT+4)}, {s(sT+1)}, 7")
    a.e(f"s_cmp_eq_u32 {s(sT)}, 0")
    a.e(f"s_cselect_b32 {s(sT+2)}, 127, {s(sT+2)}")
    a.e(f"s_cmp_ge_u32 {s(sT+2)}, 255")
    a.e(f"s_cselect_b32 {s(sT+3)}, 1, {s(sT+3)}")
    a.e(f"s_cmp_lt_u32 {s(sT+2)}, 27")
    a.e(f"s_cselect_b32 {s(sT+3)}, 1, {s(sT+3)}")
    a.e(f"s_add_u32 {s(sT+4)}, {s(sT+4)}, 10")
    a.e(f"s_cmp_lt_u32 {s(sT+4)}, {s(sT+2)}")
    a.e(f"s_cselect_b32 {s(sT+3)}, 1, {s(sT+3)}")
    a.e(f"s_mov_b32 s89, {s(sT+3)}")
    a.e(f"s_sub_u32 {s(sS)}, 280, {s(sT+2)}")
    a.e(f"s_lshl_b32 {s(sS)}, {s(sS)}, 23")
    a.e(f"s_sub_u32 {s(sInv)}, {s(sT+2)}, 26")
    a.e(f"s_lshl_b32 {s(sInv)}, {s(sInv)}, 23")
    X = vP
    a.e(f"v_cmp_eq_u32 vcc, 0, {v(vSub)}")
    for sl in range(NS):
        a.e(f"v_lshrrev_b32 {v(vT+sl)}, 14, {v(vE+sl)}")
    for sl in range(NS):
        a.e(f"v_add_u32 {v(vT+sl)}, 3, {v(vT+sl)}")
    for sl in range(NS):
        a.e(f"v_lshrrev_b32 {v(vT+sl)}, 2, {v(vT+sl)}")
    for sl in range(NS):
        a.e(f"v_cndmask_b32 {v(X+sl)}, 0, {v(vT+sl)}, vcc")
    dpp_scan_incl(a, [X+sl for sl in range(NS)])
    a.e(f"s_lshl_b32 {s(sT)}, {s(sW)}, 2")
    a.e(f"s_add_u32 {s(sT)}, {s(sT)}, {MISC}")
    a.e(f"v_mov_b32 {v(vT+10)}, {s(sT)}")
    a.e("s_mov_b32 exec_lo, 0")
    a.e("s_mov_b32 exec_hi, 0x80000000")
    for sl in range(NS):
        a.e(f"ds_write_b32 {v(vT+10)}, {v(X+sl)} offset:{64*sl}")
    a.e("s_mov_b64 exec, -1")
    for sl in range(NS):
        a.e(f"v_sub_u32 {v(X+sl)}, {v(X+sl)}, {v(vT+sl)}")
    a.e("s_waitcnt lgkmcnt(0)")
    a.e("s_barrier")
    a.e(f"v_and_b32 {v(vT+10)}, 15, v0")
    a.e(f"v_lshlrev_b32 {v(vT+10)}, 2, {v(vT+10)}")
    a.e(f"v_add_u32 {v(vT+10)}, {MISC}, {v(vT+10)}")
    W = 56
    for sl in range(NS):
        a.e(f"ds_read_b32 {v(W+sl)}, {v(vT+10)} offset:{64*sl}")
    a.e("s_waitcnt lgkmcnt(0)")
    for sl in range(NS):
        a.e(f"v_mov_b32 {v(W+10+sl)}, {v(W+sl)}")
    dpp_scan_incl(a, [W+10+sl for sl in range(NS)], full=False)
    for sl in range(NS):
        a.e(f"v_sub_u32 {v(W+sl)}, {v(W+10+sl)}, {v(W+sl)}")
    a.e("s_nop 1")
    for sl in range(NS):
        a.e(f"v_readlane_b32 {s(sGt+sl)}, {v(W+10+sl)}, 15")
    for sl in range(NS):
        a.e(f"v_readlane_b32 {s(sT)}, {v(W+sl)}, {s(sW)}")
        a.e("s_nop 1")
        a.e(f"v_add_u32 {v(X+sl)}, {s(sT)}, {v(X+sl)}")
        a.e("s_nop 0")
    for sl in range(NS):
        a.e(f"s_cmp_gt_u32 {s(sGt+sl)}, {CAP}")
        a.e(f"s_cselect_b32 s89, 1, s89")
    a.e("s_cmp_lg_u32 s89, 0")
    a.e("s_cbranch_scc1 k2_slow")

    def build_map(sl, buf, wb=None):
        L = a.newlabel("k2_map"); Ld = a.newlabel("k2_mapd")
        cnt, gi, ent, ad, rem = vT, vT+1, vT+2, vT+3, vT+4
        a.e(f"v_lshrrev_b32 {v(cnt)}, 14, {v(vE+sl)}")
        a.e(f"v_and_b32 {v(ent)}, 0x3fff, {v(vE+sl)}")
        a.e(f"v_add_u32 {v(ent)}, {v(ent)}, {v(vSub)}")
        a.e(f"v_mad_u32_u24 {v(ent)}, {v(ent)}, 24, {v(vC)}")
        a.e(f"v_lshlrev_b32 {v(rem)}, 2, {v(vSub)}")
        a.e(f"v_sub_u32 {v(rem)}, {v(cnt)}, {v(rem)}")
        a.e(f"v_add_u32 {v(ad)}, {v(vP+sl)}, {v(vSub)}")
        a.e(f"v_lshlrev_b32 {v(ad)}, 2, {v(ad)}")
        a.e(f"v_add_u32 {v(ad)}, {MAP[buf]}, {v(ad)}")
        a.label(L)
        a.e(f"v_cmpx_lt_i32 vcc, 0, {v(rem)}")
        a.e(f"s_cbranch_execz {Ld}")
        a.e(f"v_min_u32 {v(gi)}, 4, {v(rem)}")
        a.e(f"v_add3_u32 {v(gi)}, {v(gi)}, {v(ent)}, -1")
        a.e(f"ds_write_b32 {v(ad)}, {v(gi)}")
        a.e(f"v_add_u32 {v(ent)}, 96, {v(ent)}")
        a.e(f"v_add_u32 {v(ad)}, 16, {v(ad)}")
        a.e(f"v_add_u32 {v(rem)}, -16, {v(rem)}")
        a.e(f"s_branch {L}")
        a.label(Ld)
        a.e("s_mov_b64 exec, -1")

    def load_records(sl, b):
        for r in range(2):
            Ls = a.newlabel("k2_lr")
            R = RW(b, r)
            m0 = MK(b, r, 0)
            if r == 1:
                a.e(f"s_lshl_b32 {s(sT)}, {s(sW)}, 6")
                a.e(f"s_add_u32 {s(sT)}, {s(sT)}, 1024")
                a.e(f"s_mov_b64 {s(m0,2)}, 0")
                a.e(f"s_cmp_gt_u32 {s(sGt+sl)}, {s(sT)}")
                a.e(f"s_cbranch_scc0 {Ls}")
                a.e(f"v_add_u32 {v(vT+8)}, 1024, v0")
                a.e(f"v_cmp_gt_u32 {s(m0,2)}, {s(sGt+sl)}, {v(vT+8)}")
            else:
                a.e(f"v_cmp_gt_u32 {s(m0,2)}, {s(sGt+sl)}, v0")
            a.e(f"ds_read_b32 {v(R+6)}, {v(vG0)} offset:0" if False else "")
            a.e(f"v_add_u32 {v(vT+9)}, {MAP[b] + 4096*r}, {v(vG0)}")
            a.e(f"ds_read_b32 {v(R+6)}, {v(vT+9)}")
            a.e(f"s_mov_b64 exec, {s(m0,2)}")
            a.e(f"s_cbranch_execz {Ls}")
            a.e("s_waitcnt lgkmcnt(0)")
            a.e(f"v_and_b32 {v(vT+8)}, 3, {v(R+6)}")
            a.e(f"v_and_b32 {v(R+7)}, -4, {v(R+6)}")
            for j in range(1, 4):
                a.e(f"v_cmp_le_u32 {s(MK(b,r,j),2)}, {j}, {v(vT+8)}")
            a.e(f"buffer_load_dwordx4 {v(R,4)}, {v(R+7)}, s[24:27], 0 offen{G.NT_REC_LD}")
            a.e(f"buffer_load_dwordx2 {v(R+4,2)}, {v(R+7)}, s[24:27], 0 offen offset:16{G.NT_REC_LD}")
            a.label(Ls)
            a.e("s_mov_b64 exec, -1")

    def rows(b, body):
        for r in range(2):
            Ls = a.newlabel("k2_row")
            a.e(f"s_mov_b64 exec, {s(MK(b,r,0),2)}")
            a.e(f"s_cbranch_execz {Ls}")
            body(r)
            a.label(Ls)
        a.e("s_mov_b64 exec, -1")

    def check(b):
        def body(r):
            for j in range(4):
                if j: a.e(f"s_mov_b64 exec, {s(MK(b,r,j),2)}")
                x = V(r, j)
                a.e(f"v_max3_i32 {v(vMax)}, {v(vMax)}, {v(x)}, {v(x+1)}")
                a.e(f"v_min3_i32 {v(vMin)}, {v(vMin)}, {v(x)}, {v(x+1)}")
                a.e(f"v_max3_i32 {v(vMax)}, {v(vMax)}, {v(x+2)}, {v(x+3)}")
                a.e(f"v_min3_i32 {v(vMin)}, {v(vMin)}, {v(x+2)}, {v(x+3)}")
        rows(b, body)

    def gather(b):
        def body(r):
            R = RW(b, r)
            for j in range(4):
                a.e(f"v_mad_u32_u16 {v(vT+j)}, {v(R+j)}, 8, {v(vSl)}")
            for j in range(4):
                if j: a.e(f"s_mov_b64 exec, {s(MK(b,r,j),2)}")
                a.e(f"ds_read_b64 {v(V(r,j),2)}, {v(vT+j)}")
        rows(b, body)

    def accumulate(b, f32=False):
        def body(r):
            R = RW(b, r)
            for j in range(4):
                x = V(r, j); cs = vT + 8 + j; ao = vT + 12 + j
                C = R + 4 + (j >> 1)
                if j & 1: a.e(f"v_and_b32 {v(cs)}, {s(sHi)}, {v(C)}")
                else:     a.e(f"v_lshlrev_b32 {v(cs)}, 16, {v(C)}")
                if not f32: a.e(f"v_mul_f32 {v(cs)}, {s(sS)}, {v(cs)}")
                a.e(f"v_and_b32 {v(x+3)}, {s(sHi)}, {v(x+1)}")
                a.e(f"v_lshlrev_b32 {v(x+2)}, 16, {v(x+1)}")
                a.e(f"v_and_b32 {v(x+1)}, {s(sHi)}, {v(x)}")
                a.e(f"v_lshlrev_b32 {v(x)}, 16, {v(x)}")
                for i in range(4): a.e(f"v_mul_f32 {v(x+i)}, {v(cs)}, {v(x+i)}")
                if not f32:
                    for i in range(4): a.e(f"v_cvt_rpi_i32_f32 {v(x+i)}, {v(x+i)}")
                a.e(f"v_mad_u32_u16 {v(ao)}, {v(R+j)}, 8, 0 op_sel:[1,0,0,0]")
            for j in range(4):
                x = V(r, j); ao = vT + 12 + j
                if j: a.e(f"s_mov_b64 exec, {s(MK(b,r,j),2)}")
                if not f32:
                    a.e(f"ds_add_rtn_u64 {v(x,2)}, {v(ao)}, {v(x,2)}")
                    a.e(f"ds_add_rtn_u64 {v(x+2,2)}, {v(ao)}, {v(x+2,2)} offset:{ACC1}")
                else:
                    a.e(f"ds_add_f32 {v(ao)}, {v(x)}")
                    a.e(f"ds_add_f32 {v(ao)}, {v(x+1)} offset:4")
                    a.e(f"ds_add_f32 {v(ao)}, {v(x+2)} offset:{ACC1}")
                    a.e(f"ds_add_f32 {v(ao)}, {v(x+3)} offset:{ACC1+4}")
        rows(b, body)

    stamp(a, 2)
    build_map(0, 0)
    a.e("s_waitcnt lgkmcnt(0)")
    a.e("s_barrier")
    load_records(0, 0)
    build_map(1, 1)
    for sl in range(NS):
        b = sl & 1
        a.e("s_waitcnt vmcnt(0) lgkmcnt(0)")
        stamp(a, 3 + 4*sl)
        if sl > 0: check(1 - b)
        a.e("s_barrier")
        stamp(a, 4 + 4*sl)
        gather(b)
        a.e("s_waitcnt lgkmcnt(0)")
        stamp(a, 5 + 4*sl)
        a.e("s_barrier")
        stamp(a, 6 + 4*sl)
        if sl + 1 < NS:
            fill(sl + 1)
            load_records(sl + 1, 1 - b)
        if sl + 2 < NS:
            build_map(sl + 2, b)
        accumulate(b)
    a.e("s_waitcnt lgkmcnt(0)")
    stamp(a, 43)
    check((NS - 1) & 1)
    a.e(f"v_mov_b32 {v(vT)}, 0x40000000")
    a.e(f"v_cmp_le_i32 vcc, {v(vT)}, {v(vMax)}")
    a.e(f"v_sub_u32 {v(vT)}, 0, {v(vT)}")
    a.e(f"v_cmp_gt_i32 s[8:9], {v(vT)}, {v(vMin)}")
    a.e("s_or_b64 vcc, vcc, s[8:9]")
    a.e(f"v_mov_b32 {v(vT+1)}, {MISC + 1024}")
    a.e(f"v_mov_b32 {v(vT+2)}, 0")
    a.e(f"s_cmp_lg_u32 {s(sW)}, 0")
    a.e("s_cbranch_scc1 k2_flag1")
    a.e(f"ds_write_b32 {v(vT+1)}, {v(vT+2)}")
    a.e("s_waitcnt lgkmcnt(0)")
    a.label("k2_flag1")
    a.e("s_barrier")
    a.e("s_cbranch_vccz k2_flag2")
    a.e(f"v_mov_b32 {v(vT+2)}, 1")
    a.e(f"ds_write_b32 {v(vT+1)}, {v(vT+2)}")
    a.e("s_waitcnt lgkmcnt(0)")
    a.label("k2_flag2")
    a.e("s_barrier")
    a.e(f"ds_read_b32 {v(vT+2)}, {v(vT+1)}")
    a.e("s_waitcnt lgkmcnt(0)")
    a.e(f"v_readfirstlane_b32 {s(sT)}, {v(vT+2)}")
    a.e("s_nop 3")
    a.e(f"s_cmp_lg_u32 {s(sT)}, 0")
    a.e("s_cbranch_scc1 k2_slow")
    a.label("k2_epi")
    stamp(a, 44)
    a.e(f"v_lshlrev_b32 {v(vT)}, 3, v0")
    for i in range(5):
        x = 56 + 4 * i
        a.e(f"ds_read_b64 {v(x,2)}, {v(vT)} offset:{ACC0 + i*8192}")
        a.e(f"ds_read_b64 {v(x+2,2)}, {v(vT)} offset:{(ACC1 + i*8192) if ACC1 + i*8192 < 65536 else 0}" if ACC1 + i*8192 < 65536 else "")
    a.e(f"v_add_u32 {v(vT+1)}, {ACC1 + 4*8192}, {v(vT)}")
    a.e(f"ds_read_b64 {v(56+16+2,2)}, {v(vT+1)}")
    a.e("s_waitcnt lgkmcnt(0)")
    a.e("s_cmp_lg_u32 s89, 0")
    a.e("s_cbranch_scc1 k2_epi_st")
    for i in range(5):
        x = 56 + 4 * i
        for k in range(4):
            a.e(f"v_cvt_f32_i32 {v(x+k)}, {v(x+k)}")
        for k in range(4):
            a.e(f"v_mul_f32 {v(x+k)}, {s(sInv)}, {v(x+k)}")
    a.label("k2_epi_st")
    for i in range(5):
        a.e(f"s_mov_b32 {s(sT)}, {i*16384}")
        a.e(f"buffer_store_dwordx4 {v(56+4*i,4)}, v1, s[36:39], {s(sT)} offen{G.PART_ST}")
    if G.PROF:
        a.e("s_waitcnt vmcnt(0)")
        stamp(a, 45); stamp_rt(a, 46)
        stamp_out(a, 6, 7, 1, srdreg=8)
    if G.DBGT:
        a.e("s_waitcnt vmcnt(0)")
        G.dbg_time(a, 1, 1)
    a.e("s_branch k2_end")

    a.label("k2_slow")
    a.e("s_mov_b32 s89, 1")
    a.e("s_waitcnt vmcnt(0) lgkmcnt(0)")
    a.e("s_barrier")
    for i in range(4): a.e(f"v_mov_b32 {v(vT+4+i)}, 0")
    for i in range(4):
        a.e(f"ds_write_b128 v1, {v(vT+4,4)} offset:{i*16384}")
    a.e(f"v_add_u32 {v(vT+2)}, 0x10000, v1")
    a.e("v_cmp_gt_u32 vcc, 904, v0")
    a.e("s_and_saveexec_b64 s[8:9], vcc")
    a.e(f"ds_write_b128 {v(vT+2)}, {v(vT+4,4)}")
    a.e("s_mov_b64 exec, s[8:9]")
    for sl in range(NS):
        Lw = a.newlabel("k2_sw"); Le = a.newlabel("k2_se")
        a.e("s_waitcnt vmcnt(0) lgkmcnt(0)")
        a.e("s_barrier")
        fill(sl)
        a.e("s_mov_b32 s10, 0")
        a.label(Lw)
        a.e(f"s_cmp_ge_u32 s10, {s(sGt+sl)}")
        a.e(f"s_cbranch_scc1 {Le}")
        cnt, gi, ent, ad, rem = vT, vT+1, vT+2, vT+3, vT+4
        L = a.newlabel("k2_smap"); Ld = a.newlabel("k2_smapd"); Lk = a.newlabel("k2_smapk")
        a.e(f"v_lshrrev_b32 {v(cnt)}, 14, {v(vE+sl)}")
        a.e(f"v_and_b32 {v(ent)}, 0x3fff, {v(vE+sl)}")
        a.e(f"v_add_u32 {v(ent)}, {v(ent)}, {v(vSub)}")
        a.e(f"v_mad_u32_u24 {v(ent)}, {v(ent)}, 24, {v(vC)}")
        a.e(f"v_lshlrev_b32 {v(rem)}, 2, {v(vSub)}")
        a.e(f"v_sub_u32 {v(rem)}, {v(cnt)}, {v(rem)}")
        a.e(f"v_add_u32 {v(ad)}, {v(vP+sl)}, {v(vSub)}")
        a.e(f"v_subrev_u32 {v(ad)}, s10, {v(ad)}")
        a.label(L)
        a.e(f"v_cmpx_lt_i32 vcc, 0, {v(rem)}")
        a.e(f"s_cbranch_execz {Ld}")
        a.e(f"s_mov_b64 s[12:13], exec")
        a.e(f"v_min_u32 {v(gi)}, 4, {v(rem)}")
        a.e(f"v_add3_u32 {v(gi)}, {v(gi)}, {v(ent)}, -1")
        a.e(f"v_lshlrev_b32 {v(vT+5)}, 2, {v(ad)}")
        a.e(f"v_add_u32 {v(vT+5)}, {MAP[0]}, {v(vT+5)}")
        a.e(f"v_mov_b32 {v(vT+6)}, {CAP}")
        a.e(f"v_cmpx_lt_u32 vcc, {v(ad)}, {v(vT+6)}")
        a.e(f"ds_write_b32 {v(vT+5)}, {v(gi)}")
        a.e(f"s_mov_b64 exec, s[12:13]")
        a.e(f"v_add_u32 {v(ent)}, 96, {v(ent)}")
        a.e(f"v_add_u32 {v(ad)}, 4, {v(ad)}")
        a.e(f"v_add_u32 {v(rem)}, -16, {v(rem)}")
        a.e(f"s_branch {L}")
        a.label(Ld)
        a.e("s_mov_b64 exec, -1")
        a.e("s_waitcnt vmcnt(0) lgkmcnt(0)")
        a.e("s_barrier")
        a.e(f"s_mov_b32 s11, {s(sGt+sl)}")
        a.e(f"s_sub_u32 {s(sGt+sl)}, {s(sGt+sl)}, s10")
        load_records(sl, 0)
        a.e(f"s_mov_b32 {s(sGt+sl)}, s11")
        a.e("s_waitcnt vmcnt(0) lgkmcnt(0)")
        gather(0)
        a.e("s_waitcnt lgkmcnt(0)")
        accumulate(0, f32=True)
        a.e("s_waitcnt lgkmcnt(0)")
        a.e("s_barrier")
        a.e(f"s_add_u32 s10, s10, {CAP}")
        a.e(f"s_branch {Lw}")
        a.label(Le)
    a.e("s_waitcnt vmcnt(0) lgkmcnt(0)")
    a.e("s_barrier")
    a.e("s_branch k2_epi")
    a.label("k2_end")
    a.e("s_endpgm")
    return LDS2

def bf16_round_pair(a, x, y, hi):
    a.e(f"v_cvt_pk_bf16_f32 {v(x)}, {v(x)}, {v(y)}")
    a.e(f"v_and_b32 {v(y)}, {s(hi)}, {v(x)}")
    a.e(f"v_lshlrev_b32 {v(x)}, 16, {v(x)}")

def gen_k3(a):
    a.raw(".p2align 8")
    a.raw(".type k3_kernel,@function")
    a.label("k3_kernel")
    a.e("s_cmp_ge_u32 s2, 1250")
    a.e("s_cbranch_scc1 k3_end")
    G.DBGV = 50
    G.dbg_time(a, 2, 0, sreg=94)
    a.e("s_load_dwordx2 s[4:5], s[0:1], 0")
    a.e("s_load_dwordx2 s[6:7], s[0:1], 24")
    a.e("s_load_dwordx2 s[8:9], s[0:1], 40")
    a.e("s_load_dwordx4 s[12:15], s[0:1], 56")
    a.e("s_load_dwordx4 s[16:19], s[0:1], 72")
    a.e("s_load_dwordx2 s[10:11], s[0:1], 88")
    a.e("s_load_dwordx2 s[20:21], s[0:1], 104")
    a.e("s_lshl_b32 s3, s2, 8")
    a.e("v_add_u32 v0, s3, v0")
    a.e("v_lshlrev_b32 v1, 4, v0")
    a.e("v_lshlrev_b32 v2, 3, v0")
    a.e("v_lshlrev_b32 v3, 1, v0")
    a.e("s_waitcnt lgkmcnt(0)")
    srd(a, 24, 20, 21, off_imm=G.OFF_PART, num=4*G.PARTSTR)
    srd(a, 28, 4, 5, num=G.E_*8)
    srd(a, 32, 6, 7, num=G.E_*2)
    srd(a, 36, 10, 11, num=G.E_*8)
    for q in range(4):
        a.e(f"s_mov_b32 s3, {q*G.PARTSTR}")
        a.e(f"buffer_load_dwordx4 {v(4+4*q,4)}, v1, s[24:27], s3 offen{G.PART_LD}")
    a.e("buffer_load_dwordx2 v[20:21], v2, s[28:31], 0 offen")
    a.e("buffer_load_ushort v22, v3, s[32:35], 0 offen")
    a.e("s_load_dwordx4 s[40:43], s[8:9], 0")
    a.e("s_load_dwordx16 s[44:59], s[12:13], 0")
    a.e("s_load_dwordx16 s[60:75], s[14:15], 0")
    a.e("s_load_dwordx8 s[76:83], s[16:17], 0")
    a.e("s_load_dwordx8 s[84:91], s[18:19], 0")
    a.e("s_mov_b32 s22, 0xffff0000")
    hi = 22
    a.e("s_waitcnt lgkmcnt(0)")
    a.e("s_waitcnt vmcnt(0)")
    a.e("v_lshlrev_b32 v22, 16, v22")
    def sval(base, idx):
        r = base + idx // 2
        if idx & 1: a.e(f"s_and_b32 s92, {s(r)}, s22")
        else: a.e(f"s_lshl_b32 s92, {s(r)}, 16")
        return "s92"
    for k in range(8):
        w = sval(40, k)
        a.e(f"v_subrev_f32 {v(24+k)}, {w}, v22")
    for k in range(0, 8, 2): bf16_round_pair(a, 24+k, 25+k, hi)
    for k in range(8): a.e(f"v_mul_f32 {v(24+k)}, {v(24+k)}, {v(24+k)}")
    for k in range(0, 8, 2): bf16_round_pair(a, 24+k, 25+k, hi)
    a.e("s_mov_b32 s93, 0xc1200000")
    for k in range(8): a.e(f"v_mul_f32 {v(24+k)}, s93, {v(24+k)}")
    for k in range(0, 8, 2): bf16_round_pair(a, 24+k, 25+k, hi)
    a.e("s_mov_b32 s93, 0x3fb8aa3b")
    for k in range(8): a.e(f"v_mul_f32 {v(24+k)}, s93, {v(24+k)}")
    for k in range(8): a.e(f"v_exp_f32 {v(24+k)}, {v(24+k)}")
    a.e("s_nop 0")
    for k in range(0, 8, 2): bf16_round_pair(a, 24+k, 25+k, hi)
    for dst, base in ((32, 60), (36, 44)):
        for k in range(8):
            for c in range(4):
                w = sval(base, k*4 + c)
                if k == 0: a.e(f"v_mul_f32 {v(dst+c)}, {w}, {v(24)}")
                else: a.e(f"v_fmac_f32 {v(dst+c)}, {w}, {v(24+k)}")
    for c in range(4):
        a.e(f"v_add_f32 {v(4+c)}, {v(4+c)}, {v(8+c)}")
        a.e(f"v_add_f32 {v(12+c)}, {v(12+c)}, {v(16+c)}")
    for c in range(4):
        a.e(f"v_add_f32 {v(4+c)}, {v(4+c)}, {v(12+c)}")
    for k in range(4):
        for c in range(4):
            w = sval(76, k*4 + c)
            if k == 0: a.e(f"v_mul_f32 {v(8+c)}, {w}, {v(4)}")
            else: a.e(f"v_fmac_f32 {v(8+c)}, {w}, {v(4+k)}")
    for c in range(4): a.e(f"v_mul_f32 {v(8+c)}, {v(8+c)}, {v(32+c)}")
    bf16_round_pair(a, 8, 9, hi); bf16_round_pair(a, 10, 11, hi)
    for k in range(4):
        for c in range(4):
            w = sval(84, k*4 + c)
            if k == 0: a.e(f"v_mul_f32 {v(12+c)}, {w}, {v(8)}")
            else: a.e(f"v_fmac_f32 {v(12+c)}, {w}, {v(8+k)}")
    bf16_round_pair(a, 12, 13, hi); bf16_round_pair(a, 14, 15, hi)
    bf16_round_pair(a, 36, 37, hi); bf16_round_pair(a, 38, 39, hi)
    for c in range(4): a.e(f"v_mul_f32 {v(12+c)}, {v(12+c)}, {v(36+c)}")
    bf16_round_pair(a, 12, 13, hi); bf16_round_pair(a, 14, 15, hi)
    a.e("v_lshlrev_b32 v4, 16, v20")
    a.e("v_and_b32 v5, s22, v20")
    a.e("v_lshlrev_b32 v6, 16, v21")
    a.e("v_and_b32 v7, s22, v21")
    for c in range(4): a.e(f"v_add_f32 {v(4+c)}, {v(4+c)}, {v(12+c)}")
    a.e("v_cvt_pk_bf16_f32 v4, v4, v5")
    a.e("v_cvt_pk_bf16_f32 v5, v6, v7")
    a.e("buffer_store_dwordx2 v[4:5], v2, s[36:39], 0 offen")
    if G.DBGT:
        a.e("s_waitcnt vmcnt(0)")
        G.dbg_time(a, 2, 1, sreg=94)
    a.label("k3_end")
    a.e("s_endpgm")
```

```python
import sys
from asmlib import Asm, v, s

E_ = 320000; T_ = 10240000
NCH = 256; CH = 40000
A_ = 5000; B_ = 8000; NO = 64; NSL = 40; NS = 10
NKEY = NSL * NO
H_ = 24576
RSTRIDE = 2 * H_ * 6
OFF_REC = 0
OFF_TAB = NCH * RSTRIDE
TABSTR = NKEY * 4
OFF_MAX = OFF_TAB + NCH * TABSTR
OFF_PART = OFF_MAX + 4096
PARTSTR = E_ * 16
WS_END = OFF_PART + 4 * PARTSTR

DEPTH = 4
import os
def _flag(name, default):
    x = os.environ.get(name)
    return default if x is None else (" " + x.replace("_", " ") if x else "")
NT_IN = _flag("NT_IN", " nt")
NT_REC_ST = _flag("REC_ST", "")
NT_REC_LD = _flag("REC_LD", "")
PART_ST = _flag("PART_ST", "")
PART_LD = _flag("PART_LD", "")
EXP = os.environ.get("EXP", "").split(",")

def srd(a, d, base_lo, base_hi, off_sreg=None, off_imm=0, num=None, tmp=None):
    if off_sreg is not None:
        a.e(f"s_add_u32 {s(d)}, {s(base_lo)}, {s(off_sreg)}")
        a.e(f"s_addc_u32 {s(d+1)}, {s(base_hi)}, 0")
        if off_imm:
            a.e(f"s_add_u32 {s(d)}, {s(d)}, {off_imm}")
            a.e(f"s_addc_u32 {s(d+1)}, {s(d+1)}, 0")
    elif off_imm:
        a.e(f"s_add_u32 {s(d)}, {s(base_lo)}, {off_imm}")
        a.e(f"s_addc_u32 {s(d+1)}, {s(base_hi)}, 0")
    else:
        a.e(f"s_mov_b32 {s(d)}, {s(base_lo)}")
        a.e(f"s_mov_b32 {s(d+1)}, {s(base_hi)}")
    a.e(f"s_and_b32 {s(d+1)}, {s(d+1)}, 0xffff")
    a.e(f"s_mov_b32 {s(d+2)}, {num}")
    a.e(f"s_mov_b32 {s(d+3)}, 0x20000")

def dpp_scan_incl(a, regs, full=True):
    steps = ["row_shr:1 row_mask:0xf bank_mask:0xf", "row_shr:2 row_mask:0xf bank_mask:0xf",
             "row_shr:4 row_mask:0xf bank_mask:0xf", "row_shr:8 row_mask:0xf bank_mask:0xf"]
    if full:
        steps += ["row_bcast:15 row_mask:0xa bank_mask:0xf", "row_bcast:31 row_mask:0xc bank_mask:0xf"]
    pad = max(0, 3 - len(regs))
    a.e("s_nop 1")
    for st in steps:
        for r in regs:
            a.e(f"v_add_u32_dpp {v(r)}, {v(r)}, {v(r)} {st}")
        if pad: a.e(f"s_nop {pad-1}" if pad > 0 else "")
    a.e("s_nop 1")

PROF = False
OFF_PROF = 100 << 20
VSTAMP = 127
def stamp(a, i, rt=False):
    if not PROF: return
    a.e(f"{'s_memrealtime' if rt else 's_memtime'} s[98:99]")
    a.e("s_waitcnt lgkmcnt(0)")
    a.e(f"v_writelane_b32 v{VSTAMP}, s98, {i}")
DBGT = bool(os.environ.get("DBGT"))
def dbg_time(a, kidx, which, sreg=96):
    if not DBGT: return
    L = a.newlabel("dbgt")
    a.e(f"s_load_dwordx2 s[{sreg}:{sreg+1}], s[0:1], 96")
    a.e(f"s_memrealtime s[{sreg+2}:{sreg+3}]")
    a.e("s_waitcnt lgkmcnt(0)")
    a.e(f"s_sub_u32 s{sreg}, s{sreg}, {512*kidx}")
    a.e(f"s_subb_u32 s{sreg+1}, s{sreg+1}, 0")
    if which == 0:
        a.e(f"s_not_b32 s{sreg+2}, s{sreg+2}")
    a.e(f"v_mov_b32 v{DBGV}, s{sreg+2}")
    a.e(f"v_mov_b32 v{DBGV+1}, {4*(2*kidx+which)}")
    a.e("s_mov_b64 vcc, exec")
    a.e("s_mov_b64 exec, 1")
    a.e(f"global_atomic_umax v{DBGV+1}, v{DBGV}, s[{sreg}:{sreg+1}]")
    a.e("s_mov_b64 exec, vcc")
DBGV = 6
def stamp_rt(a, i):
    stamp(a, i, True)
def stamp_out(a, wslo, wshi, kidx, srdreg=4):
    if not PROF: return
    L = a.newlabel("prof")
    a.e(f"v_readfirstlane_b32 s98, v0")
    a.e("s_nop 3")
    a.e(f"s_lshr_b32 s98, s98, 6")
    a.e(f"s_cmp_lg_u32 s98, 0")
    a.e(f"s_cbranch_scc1 {L}")
    a.e(f"s_lshl_b32 s98, s2, 8")
    srd(a, srdreg, wslo, wshi, off_sreg=98, off_imm=OFF_PROF + kidx*(1<<20), num=256)
    a.e("s_mov_b64 exec, -1")
    a.e(f"v_lshlrev_b32 v126, 2, v0")
    a.e(f"buffer_store_dword v{VSTAMP}, v126, s[{srdreg}:{srdreg+3}], 0 offen")
    a.label(L)

def gen_k1(a):
    HIST = 0; MISC = 10240; M_WT = MISC; M_MAX = MISC + 64 * 4 // 4 + 64
    M_MAX = MISC + 128
    STAGE = 10752
    LDS = STAGE + H_ * 6
    VI = 8; VO = 48; VA = 88; VT = 108
    sK8, sK5, sN8, sN5, sHi, sLo, sPt, sW = 52, 53, 54, 55, 56, 57, 58, 49
    sFreq = 16
    a.raw(".p2align 8")
    a.raw(".type k1_kernel,@function")
    a.label("k1_kernel")
    a.e("s_cmp_ge_u32 s2, 256")
    a.e("s_cbranch_scc1 k1_end")
    stamp_rt(a, 0); stamp(a, 1)
    dbg_time(a, 0, 0)
    a.e("s_load_dwordx4 s[4:7], s[0:1], 0")
    a.e("s_load_dwordx2 s[8:9], s[0:1], 16")
    a.e("s_load_dwordx2 s[10:11], s[0:1], 32")
    a.e("s_load_dwordx2 s[12:13], s[0:1], 48")
    a.e("s_load_dwordx2 s[14:15], s[0:1], 104")
    a.e("v_lshlrev_b32 v1, 4, v0")
    a.e("v_lshlrev_b32 v2, 3, v0")
    a.e("v_add_u32 v4, 0x10000, v1")
    a.e("v_add_u32 v5, 0x20000, v1")
    for i in range(4): a.e(f"v_mov_b32 {v(VT+i)}, 0")
    a.e(f"ds_write_b128 v1, {v(VT,4)}")
    a.e(f"v_readfirstlane_b32 {s(sW)}, v0")
    a.e("s_waitcnt lgkmcnt(0)")
    a.e("s_barrier")
    a.e("s_load_dword s16, s[12:13], 0")
    a.e(f"s_lshr_b32 {s(sW)}, {s(sW)}, 6")
    a.e(f"s_mul_i32 s17, s2, {CH*4}")
    srd(a, 20, 6, 7, off_sreg=17, num=CH*4)
    srd(a, 24, 8, 9, off_sreg=17, num=CH*4)
    a.e(f"s_mul_i32 s17, s2, {CH*2}")
    srd(a, 28, 10, 11, off_sreg=17, num=CH*2)
    a.e(f"s_mul_i32 s17, s2, 10000")
    srd(a, 32, 4, 5, off_sreg=17, num=10000)
    a.e(f"buffer_load_dwordx4 {v(VT+4,4)}, v1, s[32:35], 0 offen")
    a.e("v_cmp_gt_u32 vcc, 1000, v0")
    a.e("s_and_saveexec_b64 s[60:61], vcc")
    a.e("s_mov_b64 s[50:51], exec")
    def issue_quad(k):
        a.e(f"s_mov_b32 s48, {k*16000}")
        a.e(f"buffer_load_dwordx4 {v(VI+4*k,4)}, v1, s[20:23], s48 offen{NT_IN}")
        a.e(f"buffer_load_dwordx4 {v(VO+4*k,4)}, v1, s[24:27], s48 offen{NT_IN}")
        a.e(f"s_mov_b32 s48, {k*8000}")
        a.e(f"buffer_load_dwordx2 {v(VA+2*k,2)}, v2, s[28:31], s48 offen{NT_IN}")
    for k in range(DEPTH): issue_quad(k)
    a.e("s_mov_b64 exec, -1")
    a.e(f"s_mul_i32 s17, s2, {RSTRIDE}")
    srd(a, 36, 14, 15, off_sreg=17, off_imm=OFF_REC, num=RSTRIDE)
    a.e(f"s_mul_i32 s17, s2, {TABSTR}")
    srd(a, 40, 14, 15, off_sreg=17, off_imm=OFF_TAB, num=TABSTR)
    a.e(f"s_lshl_b32 s17, s2, 4")
    srd(a, 44, 14, 15, off_sreg=17, off_imm=OFF_MAX, num=16)
    a.e(f"s_mov_b32 {s(sK8)}, {-(-(1<<32)//8000)}")
    a.e(f"s_mov_b32 {s(sK5)}, {-(-(1<<32)//5000)}")
    a.e(f"s_mov_b32 {s(sN8)}, -8000")
    a.e(f"s_mov_b32 {s(sN5)}, -5000")
    a.e(f"s_mov_b32 {s(sHi)}, 0xffff0000")
    a.e(f"s_mov_b32 {s(sLo)}, 0xffff")
    a.e("v_mov_b32 v3, 1")
    a.e("s_waitcnt lgkmcnt(0)")
    a.e(f"s_lshl_b32 {s(sFreq)}, {s(sFreq)}, 16")
    a.e(f"s_cmp_ge_u32 {s(sW)}, 10")
    a.e("s_cbranch_scc1 k1_nomax")
    a.e(f"s_waitcnt vmcnt({3*DEPTH})")
    a.e("s_mov_b32 s17, 0x7fff7fff")
    for i in range(4): a.e(f"v_and_b32 {v(VT+4+i)}, s17, {v(VT+4+i)}")
    a.e(f"v_pk_max_u16 {v(VT+4)}, {v(VT+4)}, {v(VT+6)}")
    a.e(f"v_pk_max_u16 {v(VT+5)}, {v(VT+5)}, {v(VT+7)}")
    a.e(f"v_and_b32 {v(VT+8)}, {s(sLo)}, {v(VT+4)}")
    a.e(f"v_lshrrev_b32 {v(VT+9)}, 16, {v(VT+4)}")
    a.e(f"v_and_b32 {v(VT+10)}, {s(sLo)}, {v(VT+5)}")
    a.e(f"v_lshrrev_b32 {v(VT+11)}, 16, {v(VT+5)}")
    for st in ["row_shr:1", "row_shr:2", "row_shr:4", "row_shr:8"]:
        a.e("s_nop 1")
        for i in range(4):
            a.e(f"v_max_u32_dpp {v(VT+8+i)}, {v(VT+8+i)}, {v(VT+8+i)} {st} row_mask:0xf bank_mask:0xf")
    a.e(f"v_mov_b32 {v(VT+12)}, {M_MAX}")
    a.e("s_mov_b32 exec_lo, 0x80008000")
    a.e("s_mov_b32 exec_hi, 0x80008000")
    for i in range(4):
        a.e(f"ds_max_u32 {v(VT+12)}, {v(VT+8+i)} offset:{4*i}")
    a.e("s_mov_b64 exec, -1")
    a.label("k1_nomax")
    stamp(a, 2)
    a.e("s_mov_b64 exec, s[50:51]")
    for k in range(10):
        a.e(f"s_waitcnt vmcnt({3*(min(DEPTH, 10-k)-1)})")
        if k + DEPTH < 10: issue_quad(k + DEPTH)
        if k == 1: stamp(a, 3)
        if k == 5: stamp(a, 4)
        if k == 9: stamp(a, 5)
        for pr in range(2):
            t = VT + 10 * (pr & 1)
            an = VA + 2 * k + pr
            for jj in range(2):
                j = 2 * pr + jj
                I = VI + 4 * k + j; O = VO + 4 * k + j
                t0 = t + 2 * jj; t1 = t0 + 1
                a.e(f"v_mul_hi_u32_u24 {v(t0)}, {s(sK8)}, {v(I)}")
                a.e(f"v_mul_hi_u32_u24 {v(t1)}, {s(sK5)}, {v(O)}")
                a.e(f"v_mad_i32_i24 {v(I)}, {v(t0)}, {s(sN8)}, {v(I)}")
                a.e(f"v_mad_i32_i24 {v(O)}, {v(t1)}, {s(sN5)}, {v(O)}")
                a.e(f"v_lshlrev_b32 {v(t1)}, 2, {v(t1)}")
                a.e(f"v_lshl_or_b32 {v(I)}, {v(O)}, 16, {v(I)}")
                a.e(f"v_lshl_add_u32 {v(O)}, {v(t0)}, 8, {v(t1)}")
                a.e(f"ds_add_u32 {v(O)}, v3")
            c0 = t + 4; c1 = t + 5
            a.e(f"v_lshlrev_b32 {v(c0)}, 16, {v(an)}")
            a.e(f"v_and_b32 {v(c1)}, {s(sHi)}, {v(an)}")
            a.e(f"v_mul_f32 {v(c0)}, {s(sFreq)}, {v(c0)}")
            a.e(f"v_mul_f32 {v(c1)}, {s(sFreq)}, {v(c1)}")
            a.e(f"v_cvt_pk_bf16_f32 {v(c0)}, {v(c0)}, {v(c1)}")
            a.e(f"v_and_b32 {v(c1)}, {s(sHi)}, {v(c0)}")
            a.e(f"v_lshlrev_b32 {v(c0)}, 16, {v(c0)}")
            a.e(f"v_mul_f32 {v(c0)}, 0.15915494, {v(c0)}")
            a.e(f"v_mul_f32 {v(c1)}, 0.15915494, {v(c1)}")
            a.e(f"v_fract_f32 {v(c0)}, {v(c0)}")
            a.e(f"v_fract_f32 {v(c1)}, {v(c1)}")
            a.e(f"v_cos_f32 {v(c0)}, {v(c0)}")
            a.e(f"v_cos_f32 {v(c1)}, {v(c1)}")
            a.e("s_nop 0")
            a.e(f"v_cvt_pk_bf16_f32 {v(c0)}, {v(c0)}, {v(c1)}")
            O0 = VO + 4 * k + 2 * pr
            a.e(f"v_lshl_or_b32 {v(O0)}, {v(c0)}, 16, {v(O0)}")
            a.e(f"v_and_or_b32 {v(O0+1)}, {v(c0)}, {s(sHi)}, {v(O0+1)}")
    a.e("s_mov_b64 exec, -1")
    a.e("s_waitcnt lgkmcnt(0)")
    a.e("s_barrier")
    stamp(a, 6)
    c = VT; p = VT + 4; e2 = VT + 8; e3 = VT + 9; tot = VT + 10; x = VT + 11; tmp = VT + 12
    a.e(f"s_cmp_ge_u32 {s(sW)}, 10")
    a.e("s_cbranch_scc1 k1_scan1_skip")
    a.e(f"ds_read_b128 {v(c,4)}, v1")
    a.e("s_waitcnt lgkmcnt(0)")
    for i in range(4):
        a.e(f"v_add_u32 {v(p+i)}, 3, {v(c+i)}")
    for i in range(4):
        a.e(f"v_and_b32 {v(p+i)}, -4, {v(p+i)}")
    a.e(f"v_add_u32 {v(e2)}, {v(p)}, {v(p+1)}")
    a.e(f"v_add_u32 {v(e3)}, {v(e2)}, {v(p+2)}")
    a.e(f"v_add_u32 {v(tot)}, {v(e3)}, {v(p+3)}")
    a.e(f"v_mov_b32 {v(x)}, {v(tot)}")
    dpp_scan_incl(a, [x])
    a.e(f"s_lshl_b32 s17, {s(sW)}, 2")
    a.e(f"s_add_u32 s17, s17, {M_WT}")
    a.e(f"v_mov_b32 {v(tmp)}, s17")
    a.e("s_mov_b32 exec_lo, 0")
    a.e("s_mov_b32 exec_hi, 0x80000000")
    a.e(f"ds_write_b32 {v(tmp)}, {v(x)}")
    a.e("s_mov_b64 exec, -1")
    a.e("s_waitcnt lgkmcnt(0)")
    a.label("k1_scan1_skip")
    a.e("s_barrier")
    w = VT + 13; w2 = VT + 14
    a.e(f"v_and_b32 {v(tmp)}, 15, v0")
    a.e(f"v_lshlrev_b32 {v(tmp)}, 2, {v(tmp)}")
    a.e(f"ds_read_b32 {v(w)}, {v(tmp)} offset:{M_WT}")
    a.e("s_waitcnt lgkmcnt(0)")
    a.e(f"v_mov_b32 {v(w2)}, {v(w)}")
    dpp_scan_incl(a, [w2], full=False)
    a.e(f"v_sub_u32 {v(w)}, {v(w2)}, {v(w)}")
    a.e("s_nop 1")
    a.e(f"v_readlane_b32 {s(sPt)}, {v(w2)}, 15")
    a.e(f"v_readlane_b32 s59, {v(w)}, {s(sW)}")
    a.e(f"s_cmp_gt_u32 {s(sW)}, 10")
    a.e("s_cbranch_scc1 k1_scan2_done")
    a.e(f"s_cmp_eq_u32 {s(sW)}, 10")
    a.e("s_cbranch_scc1 k1_maxout")
    a.e(f"v_sub_u32 {v(x)}, {v(x)}, {v(tot)}")
    a.e(f"v_add_u32 {v(x)}, s59, {v(x)}")
    a.e(f"v_add_u32 {v(e3)}, {v(x)}, {v(e3)}")
    a.e(f"v_add_u32 {v(e2)}, {v(x)}, {v(e2)}")
    a.e(f"v_add_u32 {v(p+1)}, {v(x)}, {v(p)}")
    a.e(f"v_mov_b32 {v(p)}, {v(x)}")
    a.e(f"v_mov_b32 {v(p+2)}, {v(e2)}")
    a.e(f"v_mov_b32 {v(p+3)}, {v(e3)}")
    a.e(f"ds_write_b128 v1, {v(p,4)}")
    for i in range(4):
        a.e(f"v_lshrrev_b32 {v(VA+16+i)}, 2, {v(p+i)}")
        a.e(f"v_lshl_or_b32 {v(VA+16+i)}, {v(c+i)}, 14, {v(VA+16+i)}")
    a.e("s_branch k1_scan2_done")
    a.label("k1_maxout")
    a.e(f"v_and_b32 {v(tmp)}, 63, v0")
    a.e(f"v_lshlrev_b32 {v(tmp)}, 2, {v(tmp)}")
    a.e(f"ds_read_b32 {v(w)}, {v(tmp)} offset:{M_MAX}")
    a.e("s_waitcnt lgkmcnt(0)")
    a.e(f"buffer_store_dword {v(w)}, {v(tmp)}, s[44:47], 0 offen")
    a.label("k1_scan2_done")
    a.e("s_waitcnt lgkmcnt(0)")
    a.e("s_barrier")
    stamp(a, 7)
    a.e(f"s_cmp_ge_u32 {s(sW)}, 10")
    a.e("s_cbranch_scc1 k1_notab")
    a.e(f"v_and_b32 v6, 63, v0")
    a.e(f"v_mul_u32_u24 v6, 160, v6")
    a.e(f"s_lshl_b32 s17, {s(sW)}, 2")
    for i in range(4):
        a.e(f"buffer_store_dword {v(VA+16+i)}, v6, s[40:43], s17 offen offset:{40*i}")
    a.label("k1_notab")
    a.e("s_mov_b64 exec, s[50:51]")
    NB = 10
    for b0 in range(0, 40, NB):
        tb = (VA if (b0 // NB) % 2 == 0 else VT)
        for i in range(NB):
            a.e(f"v_and_b32 {v(tb+i)}, {s(sLo)}, {v(VO+b0+i)}")
            a.e(f"ds_add_rtn_u32 {v(tb+i)}, {v(tb+i)}, v3")
        if b0 > 0:
            tp = (VA if ((b0 - NB) // NB) % 2 == 0 else VT)
            a.e(f"s_waitcnt lgkmcnt({NB})")
            for i in range(NB):
                a.e(f"v_bfi_b32 {v(VO+b0-NB+i)}, {s(sLo)}, {v(tp+i)}, {v(VO+b0-NB+i)}")
    b0 = 40 - NB
    tp = (VA if (b0 // NB) % 2 == 0 else VT)
    a.e("s_waitcnt lgkmcnt(0)")
    for i in range(NB):
        a.e(f"v_bfi_b32 {v(VO+b0+i)}, {s(sLo)}, {v(tp+i)}, {v(VO+b0+i)}")
    stamp(a, 8)
    a.e(f"s_mov_b32 s62, {H_}")
    a.e(f"s_mov_b32 s64, {6*H_}")
    for r in range(2):
        a.e(f"v_mov_b32 v7, {(-6*H_*r) & 0xffffffff:#x}")
        for i in range(40):
            t = VA + 4 * (i % 5)
            B = VO + i; A = VI + i
            a.e(f"v_mad_u32_u16 {v(t)}, {v(B)}, 6, v7")
            a.e(f"v_and_b32 {v(t+1)}, 3, {v(B)}")
            a.e(f"v_mad_i32_i24 {v(t+2)}, {v(t+1)}, -2, {v(t)}")
            a.e(f"v_mad_i32_i24 {v(t+3)}, {v(t+1)}, -4, {v(t)}")
            a.e(f"v_cmpx_gt_u32 vcc, s64, {v(t)}")
            a.e(f"ds_write_b32 {v(t+2)}, {v(A)} offset:{STAGE}")
            a.e(f"ds_write_b16_d16_hi {v(t+3)}, {v(B)} offset:{STAGE+16}")
            a.e("s_mov_b64 exec, s[50:51]")
        a.e("s_mov_b64 exec, -1")
        if r == 0:
            a.e(f"s_min_u32 s63, {s(sPt)}, s62")
        else:
            a.e(f"s_min_u32 s63, {s(sPt)}, s62")
            a.e(f"s_sub_u32 s63, {s(sPt)}, s63")
        a.e("s_mul_i32 s63, s63, 6")
        a.e("s_add_u32 s63, s63, 15")
        a.e("s_lshr_b32 s63, s63, 4")
        a.e("s_lshl_b32 s38, s63, 4")
        a.e(f"s_add_u32 s38, s38, {r*H_*6}")
        a.e("s_waitcnt lgkmcnt(0)")
        a.e("s_barrier")
        stamp(a, 9 + 2*r)
        Q = [VA + 4 * i for i in range(5)] + [VT + 4 * i for i in range(4)]
        Lr = f"k1_rd_done{r}"; Ls = f"k1_st_done{r}"
        for i in range(9):
            off = STAGE + i * 16384
            areg = 1 if off < 65536 else (4 if off < 131072 else 5)
            a.e(f"s_cmp_gt_u32 s63, {i*1024}")
            a.e(f"s_cbranch_scc0 {Lr}")
            a.e(f"ds_read_b128 {v(Q[i],4)}, {v(areg)} offset:{off & 0xffff}")
        a.label(Lr)
        a.e("s_waitcnt lgkmcnt(0)")
        if r == 0:
            a.e("s_barrier")
        for i in range(9):
            a.e(f"s_cmp_gt_u32 s63, {i*1024}")
            a.e(f"s_cbranch_scc0 {Ls}")
            a.e(f"s_mov_b32 s48, {r*H_*6 + i*16384}")
            a.e(f"buffer_store_dwordx4 {v(Q[i],4)}, v1, s[36:39], s48 offen{NT_REC_ST}")
        a.label(Ls)
        stamp(a, 10 + 2*r)
        if r == 0:
            a.e("s_mov_b64 exec, s[50:51]")
            a.e("s_nop 1")
    if PROF:
        a.e("s_waitcnt vmcnt(0)")
        stamp(a, 13); stamp_rt(a, 14)
        stamp_out(a, 14, 15, 0)
    if DBGT:
        a.e("s_waitcnt vmcnt(0)")
        dbg_time(a, 0, 1)
    a.label("k1_end")
    a.e("s_endpgm")
    return LDS

def kd(name, vgpr, sgpr):
    return f""".p2align 6
.amdhsa_kernel {name}
  .amdhsa_next_free_vgpr {vgpr}
  .amdhsa_next_free_sgpr {sgpr}
  .amdhsa_accum_offset {(vgpr+3)//4*4}
  .amdhsa_group_segment_fixed_size 0
  .amdhsa_kernarg_size 112
  .amdhsa_user_sgpr_count 2
  .amdhsa_user_sgpr_kernarg_segment_ptr 1
  .amdhsa_system_sgpr_workgroup_id_x 1
  .amdhsa_float_denorm_mode_32 3
  .amdhsa_float_denorm_mode_16_64 3
.end_amdhsa_kernel
"""

HEADER = """; Kernarg layout (112 bytes, ptrs only, base s[0:1]):
"""

def main(out):
    global PROF
    import os
    PROF = bool(os.environ.get("PROF"))
    a = Asm()
    kernels = []
    lds1 = gen_k1(a)
    kernels.append(("k1_kernel", (256, 1024, lds1), 128, 102))
    try:
        from gen23 import gen_k2, gen_k3
        lds2 = gen_k2(a)
        kernels.append(("k2_kernel", (256, 1024, lds2), 128, 100))
        gen_k3(a)
        kernels.append(("k3_kernel", (1250, 256, 0), 64, 100))
    except ImportError:
        pass
    txt = HEADER
    for n, (g, b, l), _, _ in kernels:
        txt += f"; @launch kernel={n} grid=({g},1,1) block=({b},1,1) lds={l}\n"
    txt += '.amdgcn_target "amdgcn-amd-amdhsa--gfx950"\n.text\n'
    for n, _, _, _ in kernels:
        txt += f".globl {n}\n"
    txt += a.text()
    txt += '.section .rodata,"a"\n'
    for n, _, vg, sg in kernels:
        txt += kd(n, vg, sg)
    open(out, "w").write(txt)

if __name__ == "__main__":
    main(sys.argv[1] if len(sys.argv) > 1 else "standalone__molecular_angular_gemnet__graph.s")
```

```python
import sys
from asmlib import Asm, v, s

E_ = 320000; T_ = 10240000
NCH = 256; CH = 40000
A_ = 5000; B_ = 8000; NO = 64; NSL = 40; NS = 10
NKEY = NSL * NO
H_ = 24576
RSTRIDE = 2 * H_ * 6
OFF_REC = 0
OFF_TAB = NCH * RSTRIDE
TABSTR = NKEY * 4
OFF_MAX = OFF_TAB + NCH * TABSTR
OFF_PART = OFF_MAX + 4096
PARTSTR = E_ * 16
WS_END = OFF_PART + 4 * PARTSTR

DEPTH = 4
import os
def _flag(name, default):
    x = os.environ.get(name)
    return default if x is None else (" " + x.replace("_", " ") if x else "")
NT_IN = _flag("NT_IN", " nt")
NT_REC_ST = _flag("REC_ST", "")
NT_REC_LD = _flag("REC_LD", "")
PART_ST = _flag("PART_ST", "")
PART_LD = _flag("PART_LD", "")
EXP = os.environ.get("EXP", "").split(",")

def srd(a, d, base_lo, base_hi, off_sreg=None, off_imm=0, num=None, tmp=None):
    if off_sreg is not None:
        a.e(f"s_add_u32 {s(d)}, {s(base_lo)}, {s(off_sreg)}")
        a.e(f"s_addc_u32 {s(d+1)}, {s(base_hi)}, 0")
        if off_imm:
            a.e(f"s_add_u32 {s(d)}, {s(d)}, {off_imm}")
            a.e(f"s_addc_u32 {s(d+1)}, {s(d+1)}, 0")
    elif off_imm:
        a.e(f"s_add_u32 {s(d)}, {s(base_lo)}, {off_imm}")
        a.e(f"s_addc_u32 {s(d+1)}, {s(base_hi)}, 0")
    else:
        a.e(f"s_mov_b32 {s(d)}, {s(base_lo)}")
        a.e(f"s_mov_b32 {s(d+1)}, {s(base_hi)}")
    a.e(f"s_and_b32 {s(d+1)}, {s(d+1)}, 0xffff")
    a.e(f"s_mov_b32 {s(d+2)}, {num}")
    a.e(f"s_mov_b32 {s(d+3)}, 0x20000")

def dpp_scan_incl(a, regs, full=True):
    steps = ["row_shr:1 row_mask:0xf bank_mask:0xf", "row_shr:2 row_mask:0xf bank_mask:0xf",
             "row_shr:4 row_mask:0xf bank_mask:0xf", "row_shr:8 row_mask:0xf bank_mask:0xf"]
    if full:
        steps += ["row_bcast:15 row_mask:0xa bank_mask:0xf", "row_bcast:31 row_mask:0xc bank_mask:0xf"]
    pad = max(0, 3 - len(regs))
    a.e("s_nop 1")
    for st in steps:
        for r in regs:
            a.e(f"v_add_u32_dpp {v(r)}, {v(r)}, {v(r)} {st}")
        if pad: a.e(f"s_nop {pad-1}" if pad > 0 else "")
    a.e("s_nop 1")

PROF = False
OFF_PROF = 100 << 20
VSTAMP = 127
def stamp(a, i, rt=False):
    if not PROF: return
    a.e(f"{'s_memrealtime' if rt else 's_memtime'} s[98:99]")
    a.e("s_waitcnt lgkmcnt(0)")
    a.e(f"v_writelane_b32 v{VSTAMP}, s98, {i}")
DBGT = bool(os.environ.get("DBGT"))
def dbg_time(a, kidx, which, sreg=96):
    if not DBGT: return
    L = a.newlabel("dbgt")
    a.e(f"s_load_dwordx2 s[{sreg}:{sreg+1}], s[0:1], 96")
    a.e(f"s_memrealtime s[{sreg+2}:{sreg+3}]")
    a.e("s_waitcnt lgkmcnt(0)")
    a.e(f"s_sub_u32 s{sreg}, s{sreg}, {512*kidx}")
    a.e(f"s_subb_u32 s{sreg+1}, s{sreg+1}, 0")
    if which == 0:
        a.e(f"s_not_b32 s{sreg+2}, s{sreg+2}")
    a.e(f"v_mov_b32 v{DBGV}, s{sreg+2}")
    a.e(f"v_mov_b32 v{DBGV+1}, {4*(2*kidx+which)}")
    a.e("s_mov_b64 vcc, exec")
    a.e("s_mov_b64 exec, 1")
    a.e(f"global_atomic_umax v{DBGV+1}, v{DBGV}, s[{sreg}:{sreg+1}]")
    a.e("s_mov_b64 exec, vcc")
DBGV = 6
def stamp_rt(a, i):
    stamp(a, i, True)
def stamp_out(a, wslo, wshi, kidx, srdreg=4):
    if not PROF: return
    L = a.newlabel("prof")
    a.e(f"v_readfirstlane_b32 s98, v0")
    a.e("s_nop 3")
    a.e(f"s_lshr_b32 s98, s98, 6")
    a.e(f"s_cmp_lg_u32 s98, 0")
    a.e(f"s_cbranch_scc1 {L}")
    a.e(f"s_lshl_b32 s98, s2, 8")
    srd(a, srdreg, wslo, wshi, off_sreg=98, off_imm=OFF_PROF + kidx*(1<<20), num=256)
    a.e("s_mov_b64 exec, -1")
    a.e(f"v_lshlrev_b32 v126, 2, v0")
    a.e(f"buffer_store_dword v{VSTAMP}, v126, s[{srdreg}:{srdreg+3}], 0 offen")
    a.label(L)

def gen_k1(a):
    HIST = 0; MISC = 10240; M_WT = MISC; M_MAX = MISC + 64 * 4 // 4 + 64
    M_MAX = MISC + 128
    STAGE = 10752
    LDS = STAGE + H_ * 6
    VI = 8; VO = 48; VA = 88; VT = 108
    sK8, sK5, sN8, sN5, sHi, sLo, sPt, sW = 52, 53, 54, 55, 56, 57, 58, 49
    sFreq = 16
    a.raw(".p2align 8")
    a.raw(".type k1_kernel,@function")
    a.label("k1_kernel")
    a.e("s_cmp_ge_u32 s2, 256")
    a.e("s_cbranch_scc1 k1_end")
    stamp_rt(a, 0); stamp(a, 1)
    dbg_time(a, 0, 0)
    a.e("s_load_dwordx4 s[4:7], s[0:1], 0")
    a.e("s_load_dwordx2 s[8:9], s[0:1], 16")
    a.e("s_load_dwordx2 s[10:11], s[0:1], 32")
    a.e("s_load_dwordx2 s[12:13], s[0:1], 48")
    a.e("s_load_dwordx2 s[14:15], s[0:1], 104")
    a.e("v_lshlrev_b32 v1, 4, v0")
    a.e("v_lshlrev_b32 v2, 3, v0")
    a.e("v_add_u32 v4, 0x10000, v1")
    a.e("v_add_u32 v5, 0x20000, v1")
    for i in range(4): a.e(f"v_mov_b32 {v(VT+i)}, 0")
    a.e(f"ds_write_b128 v1, {v(VT,4)}")
    a.e(f"v_readfirstlane_b32 {s(sW)}, v0")
    a.e("s_waitcnt lgkmcnt(0)")
    a.e("s_barrier")
    a.e("s_load_dword s16, s[12:13], 0")
    a.e(f"s_lshr_b32 {s(sW)}, {s(sW)}, 6")
    a.e(f"s_mul_i32 s17, s2, {CH*4}")
    srd(a, 20, 6, 7, off_sreg=17, num=CH*4)
    srd(a, 24, 8, 9, off_sreg=17, num=CH*4)
    a.e(f"s_mul_i32 s17, s2, {CH*2}")
    srd(a, 28, 10, 11, off_sreg=17, num=CH*2)
    a.e(f"s_mul_i32 s17, s2, 10000")
    srd(a, 32, 4, 5, off_sreg=17, num=10000)
    a.e(f"buffer_load_dwordx4 {v(VT+4,4)}, v1, s[32:35], 0 offen")
    a.e("v_cmp_gt_u32 vcc, 1000, v0")
    a.e("s_and_saveexec_b64 s[60:61], vcc")
    a.e("s_mov_b64 s[50:51], exec")
    def issue_quad(k):
        a.e(f"s_mov_b32 s48, {k*16000}")
        a.e(f"buffer_load_dwordx4 {v(VI+4*k,4)}, v1, s[20:23], s48 offen{NT_IN}")
        a.e(f"buffer_load_dwordx4 {v(VO+4*k,4)}, v1, s[24:27], s48 offen{NT_IN}")
        a.e(f"s_mov_b32 s48, {k*8000}")
        a.e(f"buffer_load_dwordx2 {v(VA+2*k,2)}, v2, s[28:31], s48 offen{NT_IN}")
    for k in range(DEPTH): issue_quad(k)
    a.e("s_mov_b64 exec, -1")
    a.e(f"s_mul_i32 s17, s2, {RSTRIDE}")
    srd(a, 36, 14, 15, off_sreg=17, off_imm=OFF_REC, num=RSTRIDE)
    a.e(f"s_mul_i32 s17, s2, {TABSTR}")
    srd(a, 40, 14, 15, off_sreg=17, off_imm=OFF_TAB, num=TABSTR)
    a.e(f"s_lshl_b32 s17, s2, 4")
    srd(a, 44, 14, 15, off_sreg=17, off_imm=OFF_MAX, num=16)
    a.e(f"s_mov_b32 {s(sK8)}, {-(-(1<<32)//8000)}")
    a.e(f"s_mov_b32 {s(sK5)}, {-(-(1<<32)//5000)}")
    a.e(f"s_mov_b32 {s(sN8)}, -8000")
    a.e(f"s_mov_b32 {s(sN5)}, -5000")
    a.e(f"s_mov_b32 {s(sHi)}, 0xffff0000")
    a.e(f"s_mov_b32 {s(sLo)}, 0xffff")
    a.e("v_mov_b32 v3, 1")
    a.e("s_waitcnt lgkmcnt(0)")
    a.e(f"s_lshl_b32 {s(sFreq)}, {s(sFreq)}, 16")
    a.e(f"s_cmp_ge_u32 {s(sW)}, 10")
    a.e("s_cbranch_scc1 k1_nomax")
    a.e(f"s_waitcnt vmcnt({3*DEPTH})")
    a.e("s_mov_b32 s17, 0x7fff7fff")
    for i in range(4): a.e(f"v_and_b32 {v(VT+4+i)}, s17, {v(VT+4+i)}")
    a.e(f"v_pk_max_u16 {v(VT+4)}, {v(VT+4)}, {v(VT+6)}")
    a.e(f"v_pk_max_u16 {v(VT+5)}, {v(VT+5)}, {v(VT+7)}")
    a.e(f"v_and_b32 {v(VT+8)}, {s(sLo)}, {v(VT+4)}")
    a.e(f"v_lshrrev_b32 {v(VT+9)}, 16, {v(VT+4)}")
    a.e(f"v_and_b32 {v(VT+10)}, {s(sLo)}, {v(VT+5)}")
    a.e(f"v_lshrrev_b32 {v(VT+11)}, 16, {v(VT+5)}")
    for st in ["row_shr:1", "row_shr:2", "row_shr:4", "row_shr:8"]:
        a.e("s_nop 1")
        for i in range(4):
            a.e(f"v_max_u32_dpp {v(VT+8+i)}, {v(VT+8+i)}, {v(VT+8+i)} {st} row_mask:0xf bank_mask:0xf")
    a.e(f"v_mov_b32 {v(VT+12)}, {M_MAX}")
    a.e("s_mov_b32 exec_lo, 0x80008000")
    a.e("s_mov_b32 exec_hi, 0x80008000")
    for i in range(4):
        a.e(f"ds_max_u32 {v(VT+12)}, {v(VT+8+i)} offset:{4*i}")
    a.e("s_mov_b64 exec, -1")
    a.label("k1_nomax")
    stamp(a, 2)
    a.e("s_mov_b64 exec, s[50:51]")
    for k in range(10):
        a.e(f"s_waitcnt vmcnt({3*(min(DEPTH, 10-k)-1)})")
        if k + DEPTH < 10: issue_quad(k + DEPTH)
        if k == 1: stamp(a, 3)
        if k == 5: stamp(a, 4)
        if k == 9: stamp(a, 5)
        for pr in range(2):
            t = VT + 10 * (pr & 1)
            an = VA + 2 * k + pr
            for jj in range(2):
                j = 2 * pr + jj
                I = VI + 4 * k + j; O = VO + 4 * k + j
                t0 = t + 2 * jj; t1 = t0 + 1
                a.e(f"v_mul_hi_u32_u24 {v(t0)}, {s(sK8)}, {v(I)}")
                a.e(f"v_mul_hi_u32_u24 {v(t1)}, {s(sK5)}, {v(O)}")
                a.e(f"v_mad_i32_i24 {v(I)}, {v(t0)}, {s(sN8)}, {v(I)}")
                a.e(f"v_mad_i32_i24 {v(O)}, {v(t1)}, {s(sN5)}, {v(O)}")
                a.e(f"v_lshlrev_b32 {v(t1)}, 2, {v(t1)}")
                a.e(f"v_lshl_or_b32 {v(I)}, {v(O)}, 16, {v(I)}")
                a.e(f"v_lshl_add_u32 {v(O)}, {v(t0)}, 8, {v(t1)}")
                a.e(f"ds_add_u32 {v(O)}, v3")
            c0 = t + 4; c1 = t + 5
            a.e(f"v_lshlrev_b32 {v(c0)}, 16, {v(an)}")
            a.e(f"v_and_b32 {v(c1)}, {s(sHi)}, {v(an)}")
            a.e(f"v_mul_f32 {v(c0)}, {s(sFreq)}, {v(c0)}")
            a.e(f"v_mul_f32 {v(c1)}, {s(sFreq)}, {v(c1)}")
            a.e(f"v_cvt_pk_bf16_f32 {v(c0)}, {v(c0)}, {v(c1)}")
            a.e(f"v_and_b32 {v(c1)}, {s(sHi)}, {v(c0)}")
            a.e(f"v_lshlrev_b32 {v(c0)}, 16, {v(c0)}")
            a.e(f"v_mul_f32 {v(c0)}, 0.15915494, {v(c0)}")
            a.e(f"v_mul_f32 {v(c1)}, 0.15915494, {v(c1)}")
            a.e(f"v_fract_f32 {v(c0)}, {v(c0)}")
            a.e(f"v_fract_f32 {v(c1)}, {v(c1)}")
            a.e(f"v_cos_f32 {v(c0)}, {v(c0)}")
            a.e(f"v_cos_f32 {v(c1)}, {v(c1)}")
            a.e("s_nop 0")
            a.e(f"v_cvt_pk_bf16_f32 {v(c0)}, {v(c0)}, {v(c1)}")
            O0 = VO + 4 * k + 2 * pr
            a.e(f"v_lshl_or_b32 {v(O0)}, {v(c0)}, 16, {v(O0)}")
            a.e(f"v_and_or_b32 {v(O0+1)}, {v(c0)}, {s(sHi)}, {v(O0+1)}")
    a.e("s_mov_b64 exec, -1")
    a.e("s_waitcnt lgkmcnt(0)")
    a.e("s_barrier")
    stamp(a, 6)
    c = VT; p = VT + 4; e2 = VT + 8; e3 = VT + 9; tot = VT + 10; x = VT + 11; tmp = VT + 12
    a.e(f"s_cmp_ge_u32 {s(sW)}, 10")
    a.e("s_cbranch_scc1 k1_scan1_skip")
    a.e(f"ds_read_b128 {v(c,4)}, v1")
    a.e("s_waitcnt lgkmcnt(0)")
    for i in range(4):
        a.e(f"v_add_u32 {v(p+i)}, 3, {v(c+i)}")
    for i in range(4):
        a.e(f"v_and_b32 {v(p+i)}, -4, {v(p+i)}")
    a.e(f"v_add_u32 {v(e2)}, {v(p)}, {v(p+1)}")
    a.e(f"v_add_u32 {v(e3)}, {v(e2)}, {v(p+2)}")
    a.e(f"v_add_u32 {v(tot)}, {v(e3)}, {v(p+3)}")
    a.e(f"v_mov_b32 {v(x)}, {v(tot)}")
    dpp_scan_incl(a, [x])
    a.e(f"s_lshl_b32 s17, {s(sW)}, 2")
    a.e(f"s_add_u32 s17, s17, {M_WT}")
    a.e(f"v_mov_b32 {v(tmp)}, s17")
    a.e("s_mov_b32 exec_lo, 0")
    a.e("s_mov_b32 exec_hi, 0x80000000")
    a.e(f"ds_write_b32 {v(tmp)}, {v(x)}")
    a.e("s_mov_b64 exec, -1")
    a.e("s_waitcnt lgkmcnt(0)")
    a.label("k1_scan1_skip")
    a.e("s_barrier")
    w = VT + 13; w2 = VT + 14
    a.e(f"v_and_b32 {v(tmp)}, 15, v0")
    a.e(f"v_lshlrev_b32 {v(tmp)}, 2, {v(tmp)}")
    a.e(f"ds_read_b32 {v(w)}, {v(tmp)} offset:{M_WT}")
    a.e("s_waitcnt lgkmcnt(0)")
    a.e(f"v_mov_b32 {v(w2)}, {v(w)}")
    dpp_scan_incl(a, [w2], full=False)
    a.e(f"v_sub_u32 {v(w)}, {v(w2)}, {v(w)}")
    a.e("s_nop 1")
    a.e(f"v_readlane_b32 {s(sPt)}, {v(w2)}, 15")
    a.e(f"v_readlane_b32 s59, {v(w)}, {s(sW)}")
    a.e(f"s_cmp_gt_u32 {s(sW)}, 10")
    a.e("s_cbranch_scc1 k1_scan2_done")
    a.e(f"s_cmp_eq_u32 {s(sW)}, 10")
    a.e("s_cbranch_scc1 k1_maxout")
    a.e(f"v_sub_u32 {v(x)}, {v(x)}, {v(tot)}")
    a.e(f"v_add_u32 {v(x)}, s59, {v(x)}")
    a.e(f"v_add_u32 {v(e3)}, {v(x)}, {v(e3)}")
    a.e(f"v_add_u32 {v(e2)}, {v(x)}, {v(e2)}")
    a.e(f"v_add_u32 {v(p+1)}, {v(x)}, {v(p)}")
    a.e(f"v_mov_b32 {v(p)}, {v(x)}")
    a.e(f"v_mov_b32 {v(p+2)}, {v(e2)}")
    a.e(f"v_mov_b32 {v(p+3)}, {v(e3)}")
    a.e(f"ds_write_b128 v1, {v(p,4)}")
    for i in range(4):
        a.e(f"v_lshrrev_b32 {v(VA+16+i)}, 2, {v(p+i)}")
        a.e(f"v_lshl_or_b32 {v(VA+16+i)}, {v(c+i)}, 14, {v(VA+16+i)}")
    a.e("s_branch k1_scan2_done")
    a.label("k1_maxout")
    a.e(f"v_and_b32 {v(tmp)}, 63, v0")
    a.e(f"v_lshlrev_b32 {v(tmp)}, 2, {v(tmp)}")
    a.e(f"ds_read_b32 {v(w)}, {v(tmp)} offset:{M_MAX}")
    a.e("s_waitcnt lgkmcnt(0)")
    a.e(f"buffer_store_dword {v(w)}, {v(tmp)}, s[44:47], 0 offen")
    a.label("k1_scan2_done")
    a.e("s_waitcnt lgkmcnt(0)")
    a.e("s_barrier")
    stamp(a, 7)
    a.e(f"s_cmp_ge_u32 {s(sW)}, 10")
    a.e("s_cbranch_scc1 k1_notab")
    a.e(f"v_and_b32 v6, 63, v0")
    a.e(f"v_mul_u32_u24 v6, 160, v6")
    a.e(f"s_lshl_b32 s17, {s(sW)}, 2")
    for i in range(4):
        a.e(f"buffer_store_dword {v(VA+16+i)}, v6, s[40:43], s17 offen offset:{40*i}")
    a.label("k1_notab")
    a.e("s_mov_b64 exec, s[50:51]")
    NB = 10
    for b0 in range(0, 40, NB):
        tb = (VA if (b0 // NB) % 2 == 0 else VT)
        for i in range(NB):
            a.e(f"v_and_b32 {v(tb+i)}, {s(sLo)}, {v(VO+b0+i)}")
            a.e(f"ds_add_rtn_u32 {v(tb+i)}, {v(tb+i)}, v3")
        if b0 > 0:
            tp = (VA if ((b0 - NB) // NB) % 2 == 0 else VT)
            a.e(f"s_waitcnt lgkmcnt({NB})")
            for i in range(NB):
                a.e(f"v_bfi_b32 {v(VO+b0-NB+i)}, {s(sLo)}, {v(tp+i)}, {v(VO+b0-NB+i)}")
    b0 = 40 - NB
    tp = (VA if (b0 // NB) % 2 == 0 else VT)
    a.e("s_waitcnt lgkmcnt(0)")
    for i in range(NB):
        a.e(f"v_bfi_b32 {v(VO+b0+i)}, {s(sLo)}, {v(tp+i)}, {v(VO+b0+i)}")
    stamp(a, 8)
    a.e(f"s_mov_b32 s62, {H_}")
    a.e(f"s_mov_b32 s64, {6*H_}")
    for r in range(2):
        a.e(f"v_mov_b32 v7, {(-6*H_*r) & 0xffffffff:#x}")
        for i in range(40):
            t = VA + 4 * (i % 5)
            B = VO + i; A = VI + i
            a.e(f"v_mad_u32_u16 {v(t)}, {v(B)}, 6, v7")
            a.e(f"v_and_b32 {v(t+1)}, 3, {v(B)}")
            a.e(f"v_mad_i32_i24 {v(t+2)}, {v(t+1)}, -2, {v(t)}")
            a.e(f"v_mad_i32_i24 {v(t+3)}, {v(t+1)}, -4, {v(t)}")
            a.e(f"v_cmpx_gt_u32 vcc, s64, {v(t)}")
            a.e(f"ds_write_b32 {v(t+2)}, {v(A)} offset:{STAGE}")
            a.e(f"ds_write_b16_d16_hi {v(t+3)}, {v(B)} offset:{STAGE+16}")
            a.e("s_mov_b64 exec, s[50:51]")
        a.e("s_mov_b64 exec, -1")
        if r == 0:
            a.e(f"s_min_u32 s63, {s(sPt)}, s62")
        else:
            a.e(f"s_min_u32 s63, {s(sPt)}, s62")
            a.e(f"s_sub_u32 s63, {s(sPt)}, s63")
        a.e("s_mul_i32 s63, s63, 6")
        a.e("s_add_u32 s63, s63, 15")
        a.e("s_lshr_b32 s63, s63, 4")
        a.e("s_lshl_b32 s38, s63, 4")
        a.e(f"s_add_u32 s38, s38, {r*H_*6}")
        a.e("s_waitcnt lgkmcnt(0)")
        a.e("s_barrier")
        stamp(a, 9 + 2*r)
        Q = [VA + 4 * i for i in range(5)] + [VT + 4 * i for i in range(4)]
        Lr = f"k1_rd_done{r}"; Ls = f"k1_st_done{r}"
        for i in range(9):
            off = STAGE + i * 16384
            areg = 1 if off < 65536 else (4 if off < 131072 else 5)
            a.e(f"s_cmp_gt_u32 s63, {i*1024}")
            a.e(f"s_cbranch_scc0 {Lr}")
            a.e(f"ds_read_b128 {v(Q[i],4)}, {v(areg)} offset:{off & 0xffff}")
        a.label(Lr)
        a.e("s_waitcnt lgkmcnt(0)")
        if r == 0:
            a.e("s_barrier")
        for i in range(9):
            a.e(f"s_cmp_gt_u32 s63, {i*1024}")
            a.e(f"s_cbranch_scc0 {Ls}")
            a.e(f"s_mov_b32 s48, {r*H_*6 + i*16384}")
            a.e(f"buffer_store_dwordx4 {v(Q[i],4)}, v1, s[36:39], s48 offen{NT_REC_ST}")
        a.label(Ls)
        stamp(a, 10 + 2*r)
        if r == 0:
            a.e("s_mov_b64 exec, s[50:51]")
            a.e("s_nop 1")
    if PROF:
        a.e("s_waitcnt vmcnt(0)")
        stamp(a, 13); stamp_rt(a, 14)
        stamp_out(a, 14, 15, 0)
    if DBGT:
        a.e("s_waitcnt vmcnt(0)")
        dbg_time(a, 0, 1)
    a.label("k1_end")
    a.e("s_endpgm")
    return LDS

def kd(name, vgpr, sgpr):
    return f""".p2align 6
.amdhsa_kernel {name}
  .amdhsa_next_free_vgpr {vgpr}
  .amdhsa_next_free_sgpr {sgpr}
  .amdhsa_accum_offset {(vgpr+3)//4*4}
  .amdhsa_group_segment_fixed_size 0
  .amdhsa_kernarg_size 112
  .amdhsa_user_sgpr_count 2
  .amdhsa_user_sgpr_kernarg_segment_ptr 1
  .amdhsa_system_sgpr_workgroup_id_x 1
  .amdhsa_float_denorm_mode_32 3
  .amdhsa_float_denorm_mode_16_64 3
.end_amdhsa_kernel
"""

HEADER = """; Kernarg layout (112 bytes, ptrs only, base s[0:1]):
"""

def main(out):
    global PROF
    import os
    PROF = bool(os.environ.get("PROF"))
    a = Asm()
    kernels = []
    lds1 = gen_k1(a)
    kernels.append(("k1_kernel", (256, 1024, lds1), 128, 102))
    try:
        from gen23 import gen_k2, gen_k3
        lds2 = gen_k2(a)
        kernels.append(("k2_kernel", (256, 1024, lds2), 128, 100))
        gen_k3(a)
        kernels.append(("k3_kernel", (1250, 256, 0), 64, 100))
    except ImportError:
        pass
    order = os.environ.get("ORDER")
    if order and "0" in order:
        a.raw(".p2align 8"); a.raw(".type k0_kernel,@function"); a.label("k0_kernel"); a.e("s_endpgm")
        kernels.append(("k0_kernel", (256, 64, 0), 8, 16))
    txt = HEADER
    byname = {n: x for n, x, _, _ in kernels}
    seq = [f"k{c}_kernel" for c in order] if order else [n for n, _, _, _ in kernels]
    for n in seq:
        g, b, l = byname[n]
        txt += f"; @launch kernel={n} grid=({g},1,1) block=({b},1,1) lds={l}\n"
    txt += '.amdgcn_target "amdgcn-amd-amdhsa--gfx950"\n.text\n'
    for n, _, _, _ in kernels:
        txt += f".globl {n}\n"
    txt += a.text()
    txt += '.section .rodata,"a"\n'
    for n, _, vg, sg in kernels:
        txt += kd(n, vg, sg)
    open(out, "w").write(txt)

if __name__ == "__main__":
    main(sys.argv[1] if len(sys.argv) > 1 else "standalone__molecular_angular_gemnet__graph.s")
```

```python
from asmlib import Asm, v, s
import sys
G = sys.modules.get("__main__") if hasattr(sys.modules.get("__main__"), "OFF_REC") else __import__("gen")
srd, dpp_scan_incl, stamp, stamp_rt, stamp_out = G.srd, G.dpp_scan_incl, G.stamp, G.stamp_rt, G.stamp_out

ACC0 = 0; ACC1 = 40000; SLICE = 80000
SLICE_BYTES = 3 * 16384 + 5 * 1024
MAP = [SLICE + SLICE_BYTES, SLICE + SLICE_BYTES + 4096]
MISC = MAP[1] + 4096
CAP = 1024
LDS2 = MISC + 2048

def gen_k2(a):
    NS = G.NS
    G.VSTAMP = 127
    FB = 22
    assert G.B_ * 8 <= SLICE_BYTES
    vE = 2; vP = 14; vC = 26; vSub = 27
    def RW(b): return 28 + 8 * b
    def GR(j): return 52 + 2 * j
    def V(j): return 60 + 4 * j
    vT = 76
    vFlag, vSl, vG0, vHi, vS, vMag = 100, 101, 102, 103, 104, 105
    def MK(b, j): return 40 + 8 * b + 2 * j
    sGt = 64
    sS = 82; sInv = 83; sW = 84; sQ = 86; sO = 87; sJ = 88; sSlow = 89
    sT = 90
    a.raw(".p2align 8")
    a.raw(".type k2_kernel,@function")
    a.label("k2_kernel")
    a.e("s_cmp_ge_u32 s2, 256")
    a.e("s_cbranch_scc1 k2_end")
    stamp_rt(a, 0); stamp(a, 1)
    G.DBGV = 110
    G.dbg_time(a, 1, 0)
    a.e("s_load_dwordx2 s[4:5], s[0:1], 0")
    a.e("s_load_dwordx2 s[6:7], s[0:1], 104")
    a.e("s_and_b32 s8, s2, 7")
    a.e("s_lshl_b32 s8, s8, 5")
    a.e("s_lshr_b32 s9, s2, 3")
    a.e(f"s_add_u32 {s(sJ)}, s8, s9")
    a.e(f"s_lshr_b32 {s(sQ)}, {s(sJ)}, 6")
    a.e(f"s_and_b32 {s(sO)}, {s(sJ)}, 63")
    a.e("v_lshlrev_b32 v1, 4, v0")
    a.e(f"v_readfirstlane_b32 {s(sW)}, v0")
    a.e(f"v_lshrrev_b32 {v(vC)}, 2, v0")
    a.e(f"v_and_b32 {v(vSub)}, 3, v0")
    a.e(f"v_mul_u32_u24 {v(vT)}, {G.TABSTR}, {v(vC)}")
    a.e(f"v_and_b32 {v(vT+1)}, 63, v0")
    a.e(f"v_lshlrev_b32 {v(vT+1)}, 6, {v(vT+1)}")
    a.e(f"s_lshr_b32 {s(sW)}, {s(sW)}, 6")
    a.e(f"s_mul_i32 s8, {s(sJ)}, {4*NS}")
    a.e("s_waitcnt lgkmcnt(0)")
    srd(a, 28, 6, 7, off_sreg=8, off_imm=G.OFF_TAB, num=0)
    a.e(f"s_sub_u32 s30, {G.NCH*G.TABSTR}, s8")
    for i in range(3):
        a.e(f"buffer_load_dwordx4 {v(vE+4*i,4)}, {v(vT)}, s[28:31], 0 offen offset:{16*i}")
    srd(a, 32, 6, 7, off_imm=G.OFF_MAX, num=4096)
    for i in range(4):
        a.e(f"buffer_load_dwordx4 {v(60+4*i,4)}, {v(vT+1)}, s[32:35], 0 offen offset:{16*i}")
    srd(a, 20, 4, 5, num=G.E_*8)
    def fill(sl):
        L = a.newlabel("k2_fill")
        a.e(f"s_lshl_b32 {s(sT)}, {s(sW)}, 10")
        a.e(f"s_mul_i32 {s(sT+1)}, {s(sQ)}, {G.B_*8}")
        for i in range(4):
            if i == 3:
                a.e(f"s_cmp_ge_u32 {s(sW)}, 5")
                a.e(f"s_cbranch_scc1 {L}")
            a.e(f"s_add_u32 m0, {s(sT)}, {SLICE + i*16384}")
            a.e(f"s_add_u32 {s(sT+2)}, {s(sT+1)}, {sl*4*G.B_*8 + i*16384}")
            a.e(f"buffer_load_dwordx4 v1, s[20:23], {s(sT+2)} offen lds")
        a.label(L)
    fill(0)
    srd(a, 24, 6, 7, off_imm=G.OFF_REC, num=G.NCH*G.RSTRIDE)
    a.e(f"s_mul_i32 s8, {s(sQ)}, {G.PARTSTR}")
    a.e(f"s_mul_i32 s9, {s(sO)}, {G.A_*16}")
    a.e("s_add_u32 s8, s8, s9")
    srd(a, 36, 6, 7, off_sreg=8, off_imm=G.OFF_PART, num=G.A_*16)
    assert G.RSTRIDE % 8 == 0 and G.RSTRIDE // 8 < (1 << 16)
    a.e(f"v_mul_u32_u24 {v(vC)}, {G.RSTRIDE//8}, {v(vC)}")
    a.e(f"v_lshlrev_b32 {v(vC)}, 3, {v(vC)}")
    def init_acc(val):
        for i in range(4): a.e(f"v_mov_b32 {v(vT+4+i)}, {val}")
        for i in range(4):
            a.e(f"ds_write_b128 v1, {v(vT+4,4)} offset:{i*16384}")
        a.e(f"v_add_u32 {v(vT+2)}, 0x10000, v1")
        a.e("v_cmp_gt_u32 vcc, 904, v0")
        a.e("s_and_saveexec_b64 s[8:9], vcc")
        a.e(f"ds_write_b128 {v(vT+2)}, {v(vT+4,4)}")
        a.e("s_mov_b64 exec, s[8:9]")
    init_acc("0x40000000")
    a.e(f"v_mov_b32 {v(vFlag)}, 0")
    a.e(f"v_mov_b32 {v(vSl)}, {SLICE}")
    a.e(f"v_mov_b32 {v(vHi)}, 0xffff0000")
    a.e(f"v_mov_b32 {v(vMag)}, 0x4b400000")
    a.e(f"v_lshlrev_b32 {v(vG0)}, 2, v0")
    a.e("s_waitcnt vmcnt(7)")
    X = vP
    a.e(f"v_cmp_eq_u32 vcc, 0, {v(vSub)}")
    for sl in range(NS):
        a.e(f"v_lshrrev_b32 {v(vT+sl)}, 14, {v(vE+sl)}")
    for sl in range(NS):
        a.e(f"v_add_u32 {v(vT+sl)}, 3, {v(vT+sl)}")
    for sl in range(NS):
        a.e(f"v_lshrrev_b32 {v(vT+sl)}, 2, {v(vT+sl)}")
    for sl in range(NS):
        a.e(f"v_mov_b32 {v(X+sl)}, 0")
    a.e("s_mov_b64 exec, vcc")
    for sl in range(NS):
        a.e(f"v_mov_b32 {v(X+sl)}, {v(vT+sl)}")
    a.e("s_mov_b64 exec, -1")
    dpp_scan_incl(a, [X+sl for sl in range(NS)])
    a.e(f"s_lshl_b32 {s(sT)}, {s(sW)}, 2")
    a.e(f"s_add_u32 {s(sT)}, {s(sT)}, {MISC}")
    a.e(f"v_mov_b32 {v(vT+12)}, {s(sT)}")
    a.e("s_mov_b32 exec_lo, 0")
    a.e("s_mov_b32 exec_hi, 0x80000000")
    for sl in range(NS):
        a.e(f"ds_write_b32 {v(vT+12)}, {v(X+sl)} offset:{64*sl}")
    a.e("s_mov_b64 exec, -1")
    for sl in range(NS):
        a.e(f"v_sub_u32 {v(X+sl)}, {v(X+sl)}, {v(vT+sl)}")
    a.e("s_waitcnt lgkmcnt(0)")
    a.e("s_barrier")
    a.e(f"v_and_b32 {v(vT+12)}, 15, v0")
    a.e(f"v_lshlrev_b32 {v(vT+12)}, 2, {v(vT+12)}")
    a.e(f"v_add_u32 {v(vT+12)}, {MISC}, {v(vT+12)}")
    WT = 28; WS = 40
    for sl in range(NS):
        a.e(f"ds_read_b32 {v(WT+sl)}, {v(vT+12)} offset:{64*sl}")
    a.e("s_waitcnt lgkmcnt(0)")
    for sl in range(NS):
        a.e(f"v_mov_b32 {v(WS+sl)}, {v(WT+sl)}")
    dpp_scan_incl(a, [WS+sl for sl in range(NS)], full=False)
    for sl in range(NS):
        a.e(f"v_sub_u32 {v(WT+sl)}, {v(WS+sl)}, {v(WT+sl)}")
    a.e("s_nop 1")
    for sl in range(NS):
        a.e(f"v_readlane_b32 {s(sGt+sl)}, {v(WS+sl)}, 15")
    for sl in range(NS):
        a.e(f"v_readlane_b32 {s(40+sl)}, {v(WT+sl)}, {s(sW)}")
    a.e("s_nop 1")
    for sl in range(NS):
        a.e(f"v_add_u32 {v(X+sl)}, {s(40+sl)}, {v(X+sl)}")
    a.e(f"s_mov_b32 {s(sSlow)}, 0")
    for sl in range(NS):
        a.e(f"s_cmp_gt_u32 {s(sGt+sl)}, {CAP}")
        a.e(f"s_cselect_b32 {s(sSlow)}, 1, {s(sSlow)}")

    def scale_calc():
        mx = 60; t = vT + 8
        a.e(f"v_max3_u32 {v(t)}, {v(mx)}, {v(mx+1)}, {v(mx+2)}")
        for i in range(3, 15, 2):
            a.e(f"v_max3_u32 {v(t)}, {v(t)}, {v(mx+i)}, {v(mx+i+1)}")
        a.e(f"v_max_u32 {v(t)}, {v(t)}, {v(mx+15)}")
        for i in range(16):
            a.e(f"v_add_u32 {v(mx+i)}, -1, {v(mx+i)}")
        a.e(f"v_min3_u32 {v(t+1)}, {v(mx)}, {v(mx+1)}, {v(mx+2)}")
        for i in range(3, 15, 2):
            a.e(f"v_min3_u32 {v(t+1)}, {v(t+1)}, {v(mx+i)}, {v(mx+i+1)}")
        a.e(f"v_min_u32 {v(t+1)}, {v(t+1)}, {v(mx+15)}")
        for st in ["row_shr:1 row_mask:0xf", "row_shr:2 row_mask:0xf", "row_shr:4 row_mask:0xf", "row_shr:8 row_mask:0xf", "row_bcast:15 row_mask:0xa", "row_bcast:31 row_mask:0xc"]:
            a.e("s_nop 1")
            a.e(f"v_max_u32_dpp {v(t)}, {v(t)}, {v(t)} {st} bank_mask:0xf")
            a.e(f"v_min_u32_dpp {v(t+1)}, {v(t+1)}, {v(t+1)} {st} bank_mask:0xf")
        a.e("s_nop 1")
        a.e(f"v_readlane_b32 {s(sT)}, {v(t)}, 63")
        a.e(f"v_readlane_b32 {s(sT+1)}, {v(t+1)}, 63")
        a.e("s_nop 3")
        a.e(f"s_lshr_b32 {s(sT+2)}, {s(sT)}, 7")
        a.e(f"s_add_u32 {s(sT+4)}, {s(sT+1)}, 1")
        a.e(f"s_lshr_b32 {s(sT+4)}, {s(sT+4)}, 7")
        a.e(f"s_cmp_eq_u32 {s(sT)}, 0")
        a.e(f"s_cselect_b32 {s(sT+2)}, 127, {s(sT+2)}")
        a.e(f"s_cselect_b32 {s(sT+4)}, 127, {s(sT+4)}")
        a.e(f"s_cmp_ge_u32 {s(sT+2)}, 255")
        a.e(f"s_cselect_b32 {s(sSlow)}, 1, {s(sSlow)}")
        a.e(f"s_cmp_lt_u32 {s(sT+2)}, 22")
        a.e(f"s_cselect_b32 {s(sSlow)}, 1, {s(sSlow)}")
        a.e(f"s_add_u32 {s(sT+4)}, {s(sT+4)}, 8")
        a.e(f"s_cmp_lt_u32 {s(sT+4)}, {s(sT+2)}")
        a.e(f"s_cselect_b32 {s(sSlow)}, 1, {s(sSlow)}")
        a.e(f"s_sub_u32 {s(sS)}, {126 + FB + 127}, {s(sT+2)}")
        a.e(f"s_lshl_b32 {s(sS)}, {s(sS)}, 23")
        a.e(f"s_sub_u32 {s(sInv)}, {s(sT+2)}, {126 + FB - 127}")
        a.e(f"s_lshl_b32 {s(sInv)}, {s(sInv)}, 23")
        a.e(f"v_mov_b32 {v(vS)}, {s(sS)}")

    def build_map(sl, window=False):
        buf = 0 if window else (sl & 1)
        L = a.newlabel("k2_map"); Ld = a.newlabel("k2_mapd")
        cnt, gi, ent, ad, rem = vT+16, vT+17, vT+18, vT+19, vT+20
        a.e(f"v_lshrrev_b32 {v(cnt)}, 14, {v(vE+sl)}")
        a.e(f"v_and_b32 {v(ent)}, 0x3fff, {v(vE+sl)}")
        a.e(f"v_add_u32 {v(ent)}, {v(ent)}, {v(vSub)}")
        a.e(f"v_mad_u32_u24 {v(ent)}, {v(ent)}, 24, {v(vC)}")
        a.e(f"v_lshlrev_b32 {v(rem)}, 2, {v(vSub)}")
        a.e(f"v_sub_u32 {v(rem)}, {v(cnt)}, {v(rem)}")
        a.e(f"v_add_u32 {v(ad)}, {v(vP+sl)}, {v(vSub)}")
        if window:
            a.e(f"v_subrev_u32 {v(ad)}, s10, {v(ad)}")
        a.e(f"v_lshlrev_b32 {v(ad)}, 2, {v(ad)}")
        if not window:
            a.e(f"v_add_u32 {v(ad)}, {MAP[buf]}, {v(ad)}")
        a.label(L)
        a.e(f"v_cmpx_lt_i32 vcc, 0, {v(rem)}")
        a.e(f"s_cbranch_execz {Ld}")
        a.e(f"v_min_u32 {v(gi)}, 4, {v(rem)}")
        a.e(f"v_add3_u32 {v(gi)}, {v(gi)}, {v(ent)}, -1")
        if window:
            a.e(f"s_mov_b64 s[12:13], exec")
            a.e(f"v_mov_b32 {v(vT+21)}, {CAP*4}")
            a.e(f"v_cmpx_lt_u32 vcc, {v(ad)}, {v(vT+21)}")
            a.e(f"ds_write_b32 {v(ad)}, {v(gi)} offset:{MAP[0] & 0xffff}" if False else "")
            a.e(f"v_add_u32 {v(vT+22)}, {MAP[0]}, {v(ad)}")
            a.e(f"ds_write_b32 {v(vT+22)}, {v(gi)}")
            a.e(f"s_mov_b64 exec, s[12:13]")
        else:
            a.e(f"ds_write_b32 {v(ad)}, {v(gi)}")
        a.e(f"v_add_u32 {v(ent)}, 0x60, {v(ent)}")
        a.e(f"v_add_u32 {v(ad)}, 16, {v(ad)}")
        a.e(f"v_add_u32 {v(rem)}, -16, {v(rem)}")
        a.e(f"s_branch {L}")
        a.label(Ld)
        a.e("s_mov_b64 exec, -1")

    def map_read(sl, b, buf):
        R = RW(b)
        a.e(f"v_cmp_gt_u32 {s(MK(b,0),2)}, {s(sGt+sl)}, v0")
        a.e(f"v_add_u32 {v(vT+15)}, {MAP[buf]}, {v(vG0)}")
        a.e(f"ds_read_b32 {v(R+6)}, {v(vT+15)}")
    def rec_load(b):
        Ls = a.newlabel("k2_lr")
        R = RW(b)
        for j in range(1, 4): a.e(f"s_mov_b64 {s(MK(b,j),2)}, 0")
        a.e(f"s_mov_b64 exec, {s(MK(b,0),2)}")
        a.e(f"s_cbranch_execz {Ls}")
        a.e(f"v_and_b32 {v(R+7)}, -4, {v(R+6)}")
        a.e(f"buffer_load_dwordx4 {v(R,4)}, {v(R+7)}, s[24:27], 0 offen{G.NT_REC_LD}")
        a.e(f"buffer_load_dwordx2 {v(R+4,2)}, {v(R+7)}, s[24:27], 0 offen offset:16{G.NT_REC_LD}")
        a.e(f"v_and_b32 {v(R+6)}, 3, {v(R+6)}")
        for j in range(1, 4):
            a.e(f"v_cmp_le_u32 {s(MK(b,j),2)}, {j}, {v(R+6)}")
        a.label(Ls)
        a.e("s_mov_b64 exec, -1")
    def zero_masks(b):
        for j in range(4): a.e(f"s_mov_b64 {s(MK(b,j),2)}, 0")

    def check(b):
        if "nocheck" in G.EXP: return
        for j in range(4):
            a.e(f"s_mov_b64 exec, {s(MK(b,j),2)}")
            x = V(j)
            a.e(f"v_or3_b32 {v(vFlag)}, {v(vFlag)}, {v(x)}, {v(x+1)}")
            a.e(f"v_or3_b32 {v(vFlag)}, {v(vFlag)}, {v(x+2)}, {v(x+3)}")
        a.e("s_mov_b64 exec, -1")

    def gather(b):
        R = RW(b)
        for j in range(4):
            a.e(f"v_mad_u32_u16 {v(vT+j)}, {v(R+j)}, 1, {v(vSl)}")
        for j in range(4):
            a.e(f"s_mov_b64 exec, {s(MK(b,j),2)}")
            a.e(f"ds_read_b64 {v(GR(j),2)}, {v(vT+j)}")
        a.e("s_mov_b64 exec, -1")

    def acc_valu(b, j, f32):
        R = RW(b)
        x = V(j); g = GR(j); cs = vT + 4 + j; ao = vT + 8 + j
        C = R + 4 + (j >> 1)
        if j & 1: a.e(f"v_and_b32 {v(cs)}, {v(vHi)}, {v(C)}")
        else:     a.e(f"v_lshlrev_b32 {v(cs)}, 16, {v(C)}")
        if not f32: a.e(f"v_mul_f32 {v(cs)}, {v(vS)}, {v(cs)}")
        a.e(f"v_lshlrev_b32 {v(x)}, 16, {v(g)}")
        a.e(f"v_and_b32 {v(x+1)}, {v(vHi)}, {v(g)}")
        a.e(f"v_lshlrev_b32 {v(x+2)}, 16, {v(g+1)}")
        a.e(f"v_and_b32 {v(x+3)}, {v(vHi)}, {v(g+1)}")
        if f32:
            for i in range(4): a.e(f"v_mul_f32 {v(x+i)}, {v(cs)}, {v(x+i)}")
        else:
            for i in range(4): a.e(f"v_fma_f32 {v(x+i)}, {v(x+i)}, {v(cs)}, {v(vMag)}")
            for i in range(4): a.e(f"v_sub_u32 {v(x+i)}, {v(x+i)}, {v(vMag)}")
        a.e(f"v_lshrrev_b32 {v(ao)}, 16, {v(R+j)}")
    def acc_ds(b, j, f32):
        x = V(j); ao = vT + 8 + j
        a.e(f"s_mov_b64 exec, {s(MK(b,j),2)}")
        if f32:
            a.e(f"ds_add_f32 {v(ao)}, {v(x)}")
            a.e(f"ds_add_f32 {v(ao)}, {v(x+1)} offset:4")
            a.e(f"ds_add_f32 {v(ao)}, {v(x+2)} offset:{ACC1}")
            a.e(f"ds_add_f32 {v(ao)}, {v(x+3)} offset:{ACC1+4}")
        elif "noatom" not in G.EXP:
            a.e(f"ds_add_rtn_u64 {v(x,2)}, {v(ao)}, {v(x,2)}")
            a.e(f"ds_add_rtn_u64 {v(x+2,2)}, {v(ao)}, {v(x+2,2)} offset:{ACC1}")
        a.e("s_mov_b64 exec, -1")

    stamp(a, 2)
    a.e(f"s_cmp_lg_u32 {s(sSlow)}, 0")
    a.e("s_cbranch_scc1 k2_slow")
    build_map(0)
    build_map(1)
    a.e("s_waitcnt lgkmcnt(0)")
    a.e("s_barrier")
    map_read(0, 0, 0)
    map_read(1, 1, 1)
    a.e("s_waitcnt lgkmcnt(0)")
    rec_load(0)
    a.e("s_barrier")
    build_map(2)
    rec_load(1)
    a.e("s_waitcnt vmcnt(4)")
    scale_calc()
    a.e(f"s_cmp_lg_u32 {s(sSlow)}, 0")
    a.e("s_cbranch_scc1 k2_slow")
    a.e("s_waitcnt lgkmcnt(0)")
    for sl in range(NS):
        b = sl % 3
        if sl + 1 < NS:
            Lw = a.newlabel("k2_tw"); Lw2 = a.newlabel("k2_tw")
            a.e(f"s_cmp_eq_u64 {s(MK((sl+1)%3,0),2)}, 0")
            a.e(f"s_cbranch_scc1 {Lw}")
            a.e("s_waitcnt vmcnt(2)")
            a.e(f"s_branch {Lw2}")
            a.label(Lw)
            a.e("s_waitcnt vmcnt(0)")
            a.label(Lw2)
        else:
            a.e("s_waitcnt vmcnt(0)")
        if sl == 0: stamp(a, 3)
        a.e("s_barrier")
        gather(b)
        a.e("s_waitcnt lgkmcnt(0)")
        if sl > 0: check((sl - 1) % 3)
        a.e("s_barrier")
        stamp(a, 4 + sl)
        if sl + 1 < NS and "nofill" not in G.EXP: fill(sl + 1)
        acc_valu(b, 0, False); acc_ds(b, 0, False)
        if sl + 2 < NS: map_read(sl + 2, (sl + 2) % 3, sl & 1)
        acc_valu(b, 1, False); acc_ds(b, 1, False)
        if sl + 3 < NS: build_map(sl + 3)
        acc_valu(b, 2, False)
        if sl + 2 < NS:
            a.e("s_waitcnt lgkmcnt(0)")
            rec_load((sl + 2) % 3)
        acc_ds(b, 2, False)
        acc_valu(b, 3, False); acc_ds(b, 3, False)
    a.e("s_waitcnt lgkmcnt(0)")
    stamp(a, 43)
    check((NS - 1) % 3)
    a.e(f"v_cmp_gt_i32 vcc, 0, {v(vFlag)}")
    a.e(f"v_mov_b32 {v(vT+1)}, {MISC + 1024}")
    a.e(f"v_mov_b32 {v(vT+2)}, 0")
    a.e(f"s_cmp_lg_u32 {s(sW)}, 0")
    a.e("s_cbranch_scc1 k2_flag1")
    a.e(f"ds_write_b32 {v(vT+1)}, {v(vT+2)}")
    a.e("s_waitcnt lgkmcnt(0)")
    a.label("k2_flag1")
    a.e("s_barrier")
    a.e("s_cbranch_vccz k2_flag2")
    a.e(f"v_mov_b32 {v(vT+2)}, 1")
    a.e(f"ds_write_b32 {v(vT+1)}, {v(vT+2)}")
    a.e("s_waitcnt lgkmcnt(0)")
    a.label("k2_flag2")
    a.e("s_barrier")
    a.e(f"ds_read_b32 {v(vT+2)}, {v(vT+1)}")
    a.e("s_waitcnt lgkmcnt(0)")
    a.e(f"v_readfirstlane_b32 {s(sT)}, {v(vT+2)}")
    a.e("s_nop 3")
    a.e(f"s_cmp_lg_u32 {s(sT)}, 0")
    a.e("s_cbranch_scc1 k2_slow")
    a.label("k2_epi")
    stamp(a, 44)
    a.e(f"v_lshlrev_b32 {v(vT)}, 3, v0")
    EP = 28
    for i in range(5):
        x = EP + 4 * i
        a.e(f"ds_read_b64 {v(x,2)}, {v(vT)} offset:{ACC0 + i*8192}")
        if ACC1 + i*8192 < 65536:
            a.e(f"ds_read_b64 {v(x+2,2)}, {v(vT)} offset:{ACC1 + i*8192}")
    a.e(f"v_add_u32 {v(vT+1)}, {ACC1 + 4*8192}, {v(vT)}")
    a.e(f"ds_read_b64 {v(EP+16+2,2)}, {v(vT+1)}")
    a.e("s_waitcnt lgkmcnt(0)")
    a.e(f"s_cmp_lg_u32 {s(sSlow)}, 0")
    a.e("s_cbranch_scc1 k2_epi_st")
    a.e(f"v_mov_b32 {v(vT+2)}, 0x40000000")
    a.e(f"v_mov_b32 {v(vT+3)}, {s(sInv)}")
    for i in range(5):
        x = EP + 4 * i
        for k in range(4):
            a.e(f"v_sub_u32 {v(x+k)}, {v(x+k)}, {v(vT+2)}")
        for k in range(4):
            a.e(f"v_cvt_f32_i32 {v(x+k)}, {v(x+k)}")
        for k in range(4):
            a.e(f"v_mul_f32 {v(x+k)}, {v(vT+3)}, {v(x+k)}")
    a.label("k2_epi_st")
    for i in range(5):
        a.e(f"s_mov_b32 {s(sT)}, {i*16384}")
        a.e(f"buffer_store_dwordx4 {v(EP+4*i,4)}, v1, s[36:39], {s(sT)} offen{G.PART_ST}")
    if G.PROF:
        a.e("s_waitcnt vmcnt(0)")
        stamp(a, 45); stamp_rt(a, 46)
        stamp_out(a, 6, 7, 1, srdreg=8)
    if G.DBGT:
        a.e("s_waitcnt vmcnt(0)")
        G.dbg_time(a, 1, 1)
    a.e("s_branch k2_end")

    a.label("k2_slow")
    a.e(f"s_mov_b32 {s(sSlow)}, 1")
    a.e("s_waitcnt vmcnt(0) lgkmcnt(0)")
    a.e("s_barrier")
    init_acc("0")
    for sl in range(NS):
        Lw = a.newlabel("k2_sw"); Le = a.newlabel("k2_se")
        a.e("s_waitcnt vmcnt(0) lgkmcnt(0)")
        a.e("s_barrier")
        fill(sl)
        a.e("s_mov_b32 s10, 0")
        a.label(Lw)
        a.e(f"s_cmp_ge_u32 s10, {s(sGt+sl)}")
        a.e(f"s_cbranch_scc1 {Le}")
        build_map(sl, window=True)
        a.e("s_waitcnt vmcnt(0) lgkmcnt(0)")
        a.e("s_barrier")
        a.e(f"s_mov_b32 s11, {s(sGt+sl)}")
        a.e(f"s_sub_u32 {s(sGt+sl)}, {s(sGt+sl)}, s10")
        map_read(sl, 0, 0)
        a.e("s_waitcnt lgkmcnt(0)")
        rec_load(0)
        a.e(f"s_mov_b32 {s(sGt+sl)}, s11")
        a.e("s_waitcnt vmcnt(0) lgkmcnt(0)")
        gather(0)
        a.e("s_waitcnt lgkmcnt(0)")
        for j in range(4):
            acc_valu(0, j, True); acc_ds(0, j, True)
        a.e("s_waitcnt lgkmcnt(0)")
        a.e("s_barrier")
        a.e(f"s_add_u32 s10, s10, {CAP}")
        a.e(f"s_branch {Lw}")
        a.label(Le)
    a.e("s_waitcnt vmcnt(0) lgkmcnt(0)")
    a.e("s_barrier")
    a.e("s_branch k2_epi")
    a.label("k2_end")
    a.e("s_endpgm")
    return LDS2

def bf16_round_pair(a, x, y, hi):
    a.e(f"v_cvt_pk_bf16_f32 {v(x)}, {v(x)}, {v(y)}")
    a.e(f"v_and_b32 {v(y)}, {s(hi)}, {v(x)}")
    a.e(f"v_lshlrev_b32 {v(x)}, 16, {v(x)}")

def gen_k3(a):
    a.raw(".p2align 8")
    a.raw(".type k3_kernel,@function")
    a.label("k3_kernel")
    a.e("s_cmp_ge_u32 s2, 1250")
    a.e("s_cbranch_scc1 k3_end")
    G.DBGV = 50
    G.dbg_time(a, 2, 0, sreg=94)
    a.e("s_load_dwordx2 s[4:5], s[0:1], 0")
    a.e("s_load_dwordx2 s[6:7], s[0:1], 24")
    a.e("s_load_dwordx2 s[8:9], s[0:1], 40")
    a.e("s_load_dwordx4 s[12:15], s[0:1], 56")
    a.e("s_load_dwordx4 s[16:19], s[0:1], 72")
    a.e("s_load_dwordx2 s[10:11], s[0:1], 88")
    a.e("s_load_dwordx2 s[20:21], s[0:1], 104")
    a.e("s_lshl_b32 s3, s2, 8")
    a.e("v_add_u32 v0, s3, v0")
    a.e("v_lshlrev_b32 v1, 4, v0")
    a.e("v_lshlrev_b32 v2, 3, v0")
    a.e("v_lshlrev_b32 v3, 1, v0")
    a.e("s_waitcnt lgkmcnt(0)")
    srd(a, 24, 20, 21, off_imm=G.OFF_PART, num=4*G.PARTSTR)
    srd(a, 28, 4, 5, num=G.E_*8)
    srd(a, 32, 6, 7, num=G.E_*2)
    srd(a, 36, 10, 11, num=G.E_*8)
    for q in range(4):
        a.e(f"s_mov_b32 s3, {q*G.PARTSTR}")
        a.e(f"buffer_load_dwordx4 {v(4+4*q,4)}, v1, s[24:27], s3 offen{G.PART_LD}")
    a.e("buffer_load_dwordx2 v[20:21], v2, s[28:31], 0 offen")
    a.e("buffer_load_ushort v22, v3, s[32:35], 0 offen")
    a.e("s_load_dwordx4 s[40:43], s[8:9], 0")
    a.e("s_load_dwordx16 s[44:59], s[12:13], 0")
    a.e("s_load_dwordx16 s[60:75], s[14:15], 0")
    a.e("s_load_dwordx8 s[76:83], s[16:17], 0")
    a.e("s_load_dwordx8 s[84:91], s[18:19], 0")
    a.e("s_mov_b32 s22, 0xffff0000")
    hi = 22
    a.e("s_waitcnt lgkmcnt(0)")
    a.e("s_waitcnt vmcnt(0)")
    a.e("v_lshlrev_b32 v22, 16, v22")
    def sval(base, idx):
        r = base + idx // 2
        if idx & 1: a.e(f"s_and_b32 s92, {s(r)}, s22")
        else: a.e(f"s_lshl_b32 s92, {s(r)}, 16")
        return "s92"
    for k in range(8):
        w = sval(40, k)
        a.e(f"v_subrev_f32 {v(24+k)}, {w}, v22")
    for k in range(0, 8, 2): bf16_round_pair(a, 24+k, 25+k, hi)
    for k in range(8): a.e(f"v_mul_f32 {v(24+k)}, {v(24+k)}, {v(24+k)}")
    for k in range(0, 8, 2): bf16_round_pair(a, 24+k, 25+k, hi)
    a.e("s_mov_b32 s93, 0xc1200000")
    for k in range(8): a.e(f"v_mul_f32 {v(24+k)}, s93, {v(24+k)}")
    for k in range(0, 8, 2): bf16_round_pair(a, 24+k, 25+k, hi)
    a.e("s_mov_b32 s93, 0x3fb8aa3b")
    for k in range(8): a.e(f"v_mul_f32 {v(24+k)}, s93, {v(24+k)}")
    for k in range(8): a.e(f"v_exp_f32 {v(24+k)}, {v(24+k)}")
    a.e("s_nop 0")
    for k in range(0, 8, 2): bf16_round_pair(a, 24+k, 25+k, hi)
    for dst, base in ((32, 60), (36, 44)):
        for k in range(8):
            for c in range(4):
                w = sval(base, k*4 + c)
                if k == 0: a.e(f"v_mul_f32 {v(dst+c)}, {w}, {v(24)}")
                else: a.e(f"v_fmac_f32 {v(dst+c)}, {w}, {v(24+k)}")
    for c in range(4):
        a.e(f"v_add_f32 {v(4+c)}, {v(4+c)}, {v(8+c)}")
        a.e(f"v_add_f32 {v(12+c)}, {v(12+c)}, {v(16+c)}")
    for c in range(4):
        a.e(f"v_add_f32 {v(4+c)}, {v(4+c)}, {v(12+c)}")
    for k in range(4):
        for c in range(4):
            w = sval(76, k*4 + c)
            if k == 0: a.e(f"v_mul_f32 {v(8+c)}, {w}, {v(4)}")
            else: a.e(f"v_fmac_f32 {v(8+c)}, {w}, {v(4+k)}")
    for c in range(4): a.e(f"v_mul_f32 {v(8+c)}, {v(8+c)}, {v(32+c)}")
    bf16_round_pair(a, 8, 9, hi); bf16_round_pair(a, 10, 11, hi)
    for k in range(4):
        for c in range(4):
            w = sval(84, k*4 + c)
            if k == 0: a.e(f"v_mul_f32 {v(12+c)}, {w}, {v(8)}")
            else: a.e(f"v_fmac_f32 {v(12+c)}, {w}, {v(8+k)}")
    bf16_round_pair(a, 12, 13, hi); bf16_round_pair(a, 14, 15, hi)
    bf16_round_pair(a, 36, 37, hi); bf16_round_pair(a, 38, 39, hi)
    for c in range(4): a.e(f"v_mul_f32 {v(12+c)}, {v(12+c)}, {v(36+c)}")
    bf16_round_pair(a, 12, 13, hi); bf16_round_pair(a, 14, 15, hi)
    a.e("v_lshlrev_b32 v4, 16, v20")
    a.e("v_and_b32 v5, s22, v20")
    a.e("v_lshlrev_b32 v6, 16, v21")
    a.e("v_and_b32 v7, s22, v21")
    for c in range(4): a.e(f"v_add_f32 {v(4+c)}, {v(4+c)}, {v(12+c)}")
    a.e("v_cvt_pk_bf16_f32 v4, v4, v5")
    a.e("v_cvt_pk_bf16_f32 v5, v6, v7")
    a.e("buffer_store_dwordx2 v[4:5], v2, s[36:39], 0 offen")
    if G.DBGT:
        a.e("s_waitcnt vmcnt(0)")
        G.dbg_time(a, 2, 1, sreg=94)
    a.label("k3_end")
    a.e("s_endpgm")
```

```python
import sys
from asmlib import Asm, v, s

E_ = 320000; T_ = 10240000
NCH = 256; CH = 40000
A_ = 5000; B_ = 6720; NO = 64; NSL = 48; NS = 12
NKEY = NSL * NO
H_ = 25168
RSTRIDE = 2 * H_ * 6
OFF_REC = 0
OFF_TAB = NCH * RSTRIDE
TABSTR = NKEY * 4
OFF_MAX = OFF_TAB + NCH * TABSTR
OFF_PART = OFF_MAX + 4096
PARTSTR = E_ * 16
WS_END = OFF_PART + 4 * PARTSTR

DEPTH = 4
import os
def _flag(name, default):
    x = os.environ.get(name)
    return default if x is None else (" " + x.replace("_", " ") if x else "")
NT_IN = _flag("NT_IN", " nt")
NT_REC_ST = _flag("REC_ST", "")
NT_REC_LD = _flag("REC_LD", "")
PART_ST = _flag("PART_ST", "")
PART_LD = _flag("PART_LD", "")
EXP = os.environ.get("EXP", "").split(",")

def srd(a, d, base_lo, base_hi, off_sreg=None, off_imm=0, num=None, tmp=None):
    if off_sreg is not None:
        a.e(f"s_add_u32 {s(d)}, {s(base_lo)}, {s(off_sreg)}")
        a.e(f"s_addc_u32 {s(d+1)}, {s(base_hi)}, 0")
        if off_imm:
            a.e(f"s_add_u32 {s(d)}, {s(d)}, {off_imm}")
            a.e(f"s_addc_u32 {s(d+1)}, {s(d+1)}, 0")
    elif off_imm:
        a.e(f"s_add_u32 {s(d)}, {s(base_lo)}, {off_imm}")
        a.e(f"s_addc_u32 {s(d+1)}, {s(base_hi)}, 0")
    else:
        a.e(f"s_mov_b32 {s(d)}, {s(base_lo)}")
        a.e(f"s_mov_b32 {s(d+1)}, {s(base_hi)}")
    a.e(f"s_and_b32 {s(d+1)}, {s(d+1)}, 0xffff")
    a.e(f"s_mov_b32 {s(d+2)}, {num}")
    a.e(f"s_mov_b32 {s(d+3)}, 0x20000")

def dpp_scan_incl(a, regs, full=True):
    steps = ["row_shr:1 row_mask:0xf bank_mask:0xf", "row_shr:2 row_mask:0xf bank_mask:0xf",
             "row_shr:4 row_mask:0xf bank_mask:0xf", "row_shr:8 row_mask:0xf bank_mask:0xf"]
    if full:
        steps += ["row_bcast:15 row_mask:0xa bank_mask:0xf", "row_bcast:31 row_mask:0xc bank_mask:0xf"]
    pad = max(0, 3 - len(regs))
    a.e("s_nop 1")
    for st in steps:
        for r in regs:
            a.e(f"v_add_u32_dpp {v(r)}, {v(r)}, {v(r)} {st}")
        if pad: a.e(f"s_nop {pad-1}" if pad > 0 else "")
    a.e("s_nop 1")

PROF = False
OFF_PROF = 100 << 20
VSTAMP = 127
def stamp(a, i, rt=False):
    if not PROF: return
    a.e(f"{'s_memrealtime' if rt else 's_memtime'} s[98:99]")
    a.e("s_waitcnt lgkmcnt(0)")
    a.e(f"v_writelane_b32 v{VSTAMP}, s98, {i}")
DBGT = bool(os.environ.get("DBGT"))
def dbg_time(a, kidx, which, sreg=96):
    if not DBGT: return
    L = a.newlabel("dbgt")
    a.e(f"s_load_dwordx2 s[{sreg}:{sreg+1}], s[0:1], 96")
    a.e(f"s_memrealtime s[{sreg+2}:{sreg+3}]")
    a.e("s_waitcnt lgkmcnt(0)")
    a.e(f"s_sub_u32 s{sreg}, s{sreg}, {512*kidx}")
    a.e(f"s_subb_u32 s{sreg+1}, s{sreg+1}, 0")
    if which == 0:
        a.e(f"s_not_b32 s{sreg+2}, s{sreg+2}")
    a.e(f"v_mov_b32 v{DBGV}, s{sreg+2}")
    a.e(f"v_mov_b32 v{DBGV+1}, {4*(2*kidx+which)}")
    a.e("s_mov_b64 vcc, exec")
    a.e("s_mov_b64 exec, 1")
    a.e(f"global_atomic_umax v{DBGV+1}, v{DBGV}, s[{sreg}:{sreg+1}]")
    a.e("s_mov_b64 exec, vcc")
DBGV = 6
def stamp_rt(a, i):
    stamp(a, i, True)
def stamp_out(a, wslo, wshi, kidx, srdreg=4):
    if not PROF: return
    L = a.newlabel("prof")
    a.e(f"v_readfirstlane_b32 s98, v0")
    a.e("s_nop 3")
    a.e(f"s_lshr_b32 s98, s98, 6")
    a.e(f"s_cmp_lg_u32 s98, 0")
    a.e(f"s_cbranch_scc1 {L}")
    a.e(f"s_lshl_b32 s98, s2, 8")
    srd(a, srdreg, wslo, wshi, off_sreg=98, off_imm=OFF_PROF + kidx*(1<<20), num=256)
    a.e("s_mov_b64 exec, -1")
    a.e(f"v_lshlrev_b32 v126, 2, v0")
    a.e(f"buffer_store_dword v{VSTAMP}, v126, s[{srdreg}:{srdreg+3}], 0 offen")
    a.label(L)

def gen_k1(a):
    global VSTAMP, DBGV
    VSTAMP = 2; DBGV = 6
    HIST = 0; MISC = NKEY * 4; M_WT = MISC
    M_MAX = MISC + 128
    STAGE = MISC + 512
    NSW = NKEY // 256
    LDS = STAGE + H_ * 6
    VI = 8; VO = 48; VA = 88; VT = 108
    sK8, sK5, sN8, sN5, sHi, sLo, sPt, sW = 52, 53, 54, 55, 56, 57, 58, 49
    sFreq = 16
    a.raw(".p2align 8")
    a.raw(".type k1_kernel,@function")
    a.label("k1_kernel")
    a.e("s_cmp_ge_u32 s2, 256")
    a.e("s_cbranch_scc1 k1_end")
    stamp_rt(a, 0); stamp(a, 1)
    if DBGT: DBGV = 8
    dbg_time(a, 0, 0)
    a.e("s_load_dwordx4 s[4:7], s[0:1], 0")
    a.e("s_load_dwordx2 s[8:9], s[0:1], 16")
    a.e("s_load_dwordx2 s[10:11], s[0:1], 32")
    a.e("s_load_dwordx2 s[12:13], s[0:1], 48")
    a.e("s_load_dwordx2 s[14:15], s[0:1], 104")
    a.e("v_lshlrev_b32 v1, 4, v0")
    a.e("v_lshlrev_b32 v6, 3, v0")
    a.e("v_add_u32 v4, 0x10000, v1")
    a.e("v_add_u32 v5, 0x20000, v1")
    for i in range(4): a.e(f"v_mov_b32 {v(VT+i)}, 0")
    a.e(f"ds_write_b128 v1, {v(VT,4)}")
    a.e(f"v_readfirstlane_b32 {s(sW)}, v0")
    a.e("s_waitcnt lgkmcnt(0)")
    a.e("s_barrier")
    a.e("s_load_dword s16, s[12:13], 0")
    a.e(f"s_lshr_b32 {s(sW)}, {s(sW)}, 6")
    a.e(f"s_mul_i32 s17, s2, {CH*4}")
    srd(a, 20, 6, 7, off_sreg=17, num=CH*4)
    srd(a, 24, 8, 9, off_sreg=17, num=CH*4)
    a.e(f"s_mul_i32 s17, s2, {CH*2}")
    srd(a, 28, 10, 11, off_sreg=17, num=CH*2)
    a.e(f"s_mul_i32 s17, s2, 10000")
    srd(a, 32, 4, 5, off_sreg=17, num=10000)
    a.e(f"buffer_load_dwordx4 {v(VT+4,4)}, v1, s[32:35], 0 offen")
    a.e("v_cmp_gt_u32 vcc, 1000, v0")
    a.e("s_and_saveexec_b64 s[60:61], vcc")
    a.e("s_mov_b64 s[50:51], exec")
    def issue_quad(k):
        a.e(f"s_mov_b32 s48, {k*16000}")
        a.e(f"buffer_load_dwordx4 {v(VI+4*k,4)}, v1, s[20:23], s48 offen{NT_IN}")
        a.e(f"buffer_load_dwordx4 {v(VO+4*k,4)}, v1, s[24:27], s48 offen{NT_IN}")
        a.e(f"s_mov_b32 s48, {k*8000}")
        a.e(f"buffer_load_dwordx2 {v(VA+2*k,2)}, v6, s[28:31], s48 offen{NT_IN}")
    for k in range(DEPTH): issue_quad(k)
    a.e("s_mov_b64 exec, -1")
    a.e(f"s_mul_i32 s17, s2, {RSTRIDE}")
    srd(a, 36, 14, 15, off_sreg=17, off_imm=OFF_REC, num=RSTRIDE)
    a.e(f"s_mul_i32 s17, s2, {TABSTR}")
    srd(a, 40, 14, 15, off_sreg=17, off_imm=OFF_TAB, num=TABSTR)
    a.e(f"s_lshl_b32 s17, s2, 4")
    srd(a, 44, 14, 15, off_sreg=17, off_imm=OFF_MAX, num=16)
    a.e(f"s_mov_b32 {s(sK8)}, {-(-(1<<32)//B_)}")
    a.e(f"s_mov_b32 {s(sK5)}, {-(-(1<<32)//5000)}")
    a.e(f"s_mov_b32 {s(sN8)}, -{B_}")
    a.e(f"s_mov_b32 {s(sN5)}, -5000")
    a.e(f"s_mov_b32 {s(sHi)}, 0xffff0000")
    a.e(f"s_mov_b32 {s(sLo)}, 0xffff")
    a.e("v_mov_b32 v3, 1")
    a.e("s_waitcnt lgkmcnt(0)")
    a.e(f"s_lshl_b32 {s(sFreq)}, {s(sFreq)}, 16")
    a.e(f"s_cmp_ge_u32 {s(sW)}, 10")
    a.e("s_cbranch_scc1 k1_nomax")
    a.e(f"s_waitcnt vmcnt({3*DEPTH})")
    a.e("s_mov_b32 s17, 0x7fff7fff")
    for i in range(4): a.e(f"v_and_b32 {v(VT+4+i)}, s17, {v(VT+4+i)}")
    a.e(f"v_pk_max_u16 {v(VT+4)}, {v(VT+4)}, {v(VT+6)}")
    a.e(f"v_pk_max_u16 {v(VT+5)}, {v(VT+5)}, {v(VT+7)}")
    a.e(f"v_and_b32 {v(VT+8)}, {s(sLo)}, {v(VT+4)}")
    a.e(f"v_lshrrev_b32 {v(VT+9)}, 16, {v(VT+4)}")
    a.e(f"v_and_b32 {v(VT+10)}, {s(sLo)}, {v(VT+5)}")
    a.e(f"v_lshrrev_b32 {v(VT+11)}, 16, {v(VT+5)}")
    for st in ["row_shr:1", "row_shr:2", "row_shr:4", "row_shr:8"]:
        a.e("s_nop 1")
        for i in range(4):
            a.e(f"v_max_u32_dpp {v(VT+8+i)}, {v(VT+8+i)}, {v(VT+8+i)} {st} row_mask:0xf bank_mask:0xf")
    a.e(f"v_mov_b32 {v(VT+12)}, {M_MAX}")
    a.e("s_mov_b32 exec_lo, 0x80008000")
    a.e("s_mov_b32 exec_hi, 0x80008000")
    for i in range(4):
        a.e(f"ds_max_u32 {v(VT+12)}, {v(VT+8+i)} offset:{4*i}")
    a.e("s_mov_b64 exec, -1")
    a.label("k1_nomax")
    stamp(a, 2)
    a.e("s_mov_b64 exec, s[50:51]")
    for k in range(10):
        a.e(f"s_waitcnt vmcnt({3*(min(DEPTH, 10-k)-1)})")
        if k + DEPTH < 10: issue_quad(k + DEPTH)
        if k == 1: stamp(a, 3)
        if k == 5: stamp(a, 4)
        if k == 9: stamp(a, 5)
        for pr in range(2):
            t = VT + 10 * (pr & 1)
            an = VA + 2 * k + pr
            for jj in range(2):
                j = 2 * pr + jj
                I = VI + 4 * k + j; O = VO + 4 * k + j
                t0 = t + 2 * jj; t1 = t0 + 1
                a.e(f"v_mul_hi_u32_u24 {v(t0)}, {s(sK8)}, {v(I)}")
                a.e(f"v_mul_hi_u32_u24 {v(t1)}, {s(sK5)}, {v(O)}")
                a.e(f"v_mad_i32_i24 {v(I)}, {v(t0)}, {s(sN8)}, {v(I)}")
                a.e(f"v_mad_i32_i24 {v(O)}, {v(t1)}, {s(sN5)}, {v(O)}")
                a.e(f"v_lshlrev_b32 {v(t1)}, 2, {v(t1)}")
                a.e(f"v_lshl_or_b32 {v(I)}, {v(O)}, 16, {v(I)}")
                a.e(f"v_lshlrev_b32 {v(I)}, 3, {v(I)}")
                a.e(f"v_lshl_add_u32 {v(O)}, {v(t0)}, 8, {v(t1)}")
                a.e(f"ds_add_u32 {v(O)}, v3")
            c0 = t + 4; c1 = t + 5
            a.e(f"v_lshlrev_b32 {v(c0)}, 16, {v(an)}")
            a.e(f"v_and_b32 {v(c1)}, {s(sHi)}, {v(an)}")
            a.e(f"v_mul_f32 {v(c0)}, {s(sFreq)}, {v(c0)}")
            a.e(f"v_mul_f32 {v(c1)}, {s(sFreq)}, {v(c1)}")
            a.e(f"v_cvt_pk_bf16_f32 {v(c0)}, {v(c0)}, {v(c1)}")
            a.e(f"v_and_b32 {v(c1)}, {s(sHi)}, {v(c0)}")
            a.e(f"v_lshlrev_b32 {v(c0)}, 16, {v(c0)}")
            a.e(f"v_mul_f32 {v(c0)}, 0.15915494, {v(c0)}")
            a.e(f"v_mul_f32 {v(c1)}, 0.15915494, {v(c1)}")
            a.e(f"v_fract_f32 {v(c0)}, {v(c0)}")
            a.e(f"v_fract_f32 {v(c1)}, {v(c1)}")
            a.e(f"v_cos_f32 {v(c0)}, {v(c0)}")
            a.e(f"v_cos_f32 {v(c1)}, {v(c1)}")
            a.e("s_nop 0")
            a.e(f"v_cvt_pk_bf16_f32 {v(c0)}, {v(c0)}, {v(c1)}")
            O0 = VO + 4 * k + 2 * pr
            a.e(f"v_lshl_or_b32 {v(O0)}, {v(c0)}, 16, {v(O0)}")
            a.e(f"v_and_or_b32 {v(O0+1)}, {v(c0)}, {s(sHi)}, {v(O0+1)}")
    a.e("s_mov_b64 exec, -1")
    a.e("s_waitcnt lgkmcnt(0)")
    a.e("s_barrier")
    stamp(a, 6)
    c = VT; p = VT + 4; e2 = VT + 8; e3 = VT + 9; tot = VT + 10; x = VT + 11; tmp = VT + 12
    a.e(f"s_cmp_ge_u32 {s(sW)}, {NSW}")
    a.e("s_cbranch_scc1 k1_scan1_skip")
    a.e(f"ds_read_b128 {v(c,4)}, v1")
    a.e("s_waitcnt lgkmcnt(0)")
    for i in range(4):
        a.e(f"v_add_u32 {v(p+i)}, 3, {v(c+i)}")
    for i in range(4):
        a.e(f"v_and_b32 {v(p+i)}, -4, {v(p+i)}")
    a.e(f"v_add_u32 {v(e2)}, {v(p)}, {v(p+1)}")
    a.e(f"v_add_u32 {v(e3)}, {v(e2)}, {v(p+2)}")
    a.e(f"v_add_u32 {v(tot)}, {v(e3)}, {v(p+3)}")
    a.e(f"v_mov_b32 {v(x)}, {v(tot)}")
    dpp_scan_incl(a, [x])
    a.e(f"s_lshl_b32 s17, {s(sW)}, 2")
    a.e(f"s_add_u32 s17, s17, {M_WT}")
    a.e(f"v_mov_b32 {v(tmp)}, s17")
    a.e("s_mov_b32 exec_lo, 0")
    a.e("s_mov_b32 exec_hi, 0x80000000")
    a.e(f"ds_write_b32 {v(tmp)}, {v(x)}")
    a.e("s_mov_b64 exec, -1")
    a.e("s_waitcnt lgkmcnt(0)")
    a.label("k1_scan1_skip")
    a.e("s_barrier")
    w = VT + 13; w2 = VT + 14
    a.e(f"v_and_b32 {v(tmp)}, 15, v0")
    a.e(f"v_lshlrev_b32 {v(tmp)}, 2, {v(tmp)}")
    a.e(f"ds_read_b32 {v(w)}, {v(tmp)} offset:{M_WT}")
    a.e("s_waitcnt lgkmcnt(0)")
    a.e(f"v_mov_b32 {v(w2)}, {v(w)}")
    dpp_scan_incl(a, [w2], full=False)
    a.e(f"v_sub_u32 {v(w)}, {v(w2)}, {v(w)}")
    a.e("s_nop 1")
    a.e(f"v_readlane_b32 {s(sPt)}, {v(w2)}, 15")
    a.e(f"v_readlane_b32 s59, {v(w)}, {s(sW)}")
    a.e(f"s_cmp_gt_u32 {s(sW)}, {NSW}")
    a.e("s_cbranch_scc1 k1_scan2_done")
    a.e(f"s_cmp_eq_u32 {s(sW)}, {NSW}")
    a.e("s_cbranch_scc1 k1_maxout")
    a.e(f"v_sub_u32 {v(x)}, {v(x)}, {v(tot)}")
    a.e(f"v_add_u32 {v(x)}, s59, {v(x)}")
    a.e(f"v_add_u32 {v(e3)}, {v(x)}, {v(e3)}")
    a.e(f"v_add_u32 {v(e2)}, {v(x)}, {v(e2)}")
    a.e(f"v_add_u32 {v(p+1)}, {v(x)}, {v(p)}")
    a.e(f"v_mov_b32 {v(p)}, {v(x)}")
    a.e(f"v_mov_b32 {v(p+2)}, {v(e2)}")
    a.e(f"v_mov_b32 {v(p+3)}, {v(e3)}")
    a.e(f"ds_write_b128 v1, {v(p,4)}")
    for i in range(4):
        a.e(f"v_lshrrev_b32 {v(VA+16+i)}, 2, {v(p+i)}")
        a.e(f"v_lshl_or_b32 {v(VA+16+i)}, {v(c+i)}, 14, {v(VA+16+i)}")
    a.e("s_branch k1_scan2_done")
    a.label("k1_maxout")
    a.e(f"v_and_b32 {v(tmp)}, 63, v0")
    a.e(f"v_lshlrev_b32 {v(tmp)}, 2, {v(tmp)}")
    a.e(f"ds_read_b32 {v(w)}, {v(tmp)} offset:{M_MAX}")
    a.e("s_waitcnt lgkmcnt(0)")
    a.e(f"buffer_store_dword {v(w)}, {v(tmp)}, s[44:47], 0 offen")
    a.label("k1_scan2_done")
    a.e("s_waitcnt lgkmcnt(0)")
    a.e("s_barrier")
    stamp(a, 7)
    a.e(f"s_cmp_ge_u32 {s(sW)}, {NSW}")
    a.e("s_cbranch_scc1 k1_notab")
    a.e(f"v_and_b32 v6, 63, v0")
    a.e(f"v_mul_u32_u24 v6, {16*NS}, v6")
    a.e(f"s_lshl_b32 s17, {s(sW)}, 2")
    for i in range(4):
        a.e(f"buffer_store_dword {v(VA+16+i)}, v6, s[40:43], s17 offen offset:{4*NS*i}")
    a.label("k1_notab")
    a.e("s_mov_b64 exec, s[50:51]")
    NB = 10
    for b0 in range(0, 40, NB):
        tb = (VA if (b0 // NB) % 2 == 0 else VT)
        for i in range(NB):
            a.e(f"v_and_b32 {v(tb+i)}, {s(sLo)}, {v(VO+b0+i)}")
            a.e(f"ds_add_rtn_u32 {v(tb+i)}, {v(tb+i)}, v3")
        if b0 > 0:
            tp = (VA if ((b0 - NB) // NB) % 2 == 0 else VT)
            a.e(f"s_waitcnt lgkmcnt({NB})")
            for i in range(NB):
                a.e(f"v_bfi_b32 {v(VO+b0-NB+i)}, {s(sLo)}, {v(tp+i)}, {v(VO+b0-NB+i)}")
    b0 = 40 - NB
    tp = (VA if (b0 // NB) % 2 == 0 else VT)
    a.e("s_waitcnt lgkmcnt(0)")
    for i in range(NB):
        a.e(f"v_bfi_b32 {v(VO+b0+i)}, {s(sLo)}, {v(tp+i)}, {v(VO+b0+i)}")
    stamp(a, 8)
    a.e(f"s_mov_b32 s62, {H_}")
    a.e(f"s_mov_b32 s64, {6*H_}")
    for r in range(2):
        a.e(f"v_mov_b32 v7, {(-6*H_*r) & 0xffffffff:#x}")
        for i in range(40):
            t = VA + 4 * (i % 5)
            B = VO + i; A = VI + i
            a.e(f"v_mad_u32_u16 {v(t)}, {v(B)}, 6, v7")
            a.e(f"v_and_b32 {v(t+1)}, 3, {v(B)}")
            a.e(f"v_mad_i32_i24 {v(t+2)}, {v(t+1)}, -2, {v(t)}")
            a.e(f"v_mad_i32_i24 {v(t+3)}, {v(t+1)}, -4, {v(t)}")
            a.e(f"v_cmpx_gt_u32 vcc, s64, {v(t)}")
            a.e(f"ds_write_b32 {v(t+2)}, {v(A)} offset:{STAGE}")
            a.e(f"ds_write_b16_d16_hi {v(t+3)}, {v(B)} offset:{STAGE+16}")
            a.e("s_mov_b64 exec, s[50:51]")
        a.e("s_mov_b64 exec, -1")
        if r == 0:
            a.e(f"s_min_u32 s63, {s(sPt)}, s62")
        else:
            a.e(f"s_min_u32 s63, {s(sPt)}, s62")
            a.e(f"s_sub_u32 s63, {s(sPt)}, s63")
        a.e("s_mul_i32 s63, s63, 6")
        a.e("s_add_u32 s63, s63, 15")
        a.e("s_lshr_b32 s63, s63, 4")
        a.e("s_lshl_b32 s38, s63, 4")
        a.e(f"s_add_u32 s38, s38, {r*H_*6}")
        a.e("s_waitcnt lgkmcnt(0)")
        a.e("s_barrier")
        stamp(a, 9 + 2*r)
        Q = [VA + 4 * i for i in range(5)] + [VT + 4 * i for i in range(5)]
        NCP = -(-(H_*6//16) // 1024)
        Lr = f"k1_rd_done{r}"; Ls = f"k1_st_done{r}"
        for i in range(NCP):
            off = STAGE + i * 16384
            areg = 1 if off < 65536 else (4 if off < 131072 else 5)
            a.e(f"s_cmp_gt_u32 s63, {i*1024}")
            a.e(f"s_cbranch_scc0 {Lr}")
            a.e(f"ds_read_b128 {v(Q[i],4)}, {v(areg)} offset:{off & 0xffff}")
        a.label(Lr)
        a.e("s_waitcnt lgkmcnt(0)")
        if r == 0:
            a.e("s_barrier")
        for i in range(NCP):
            a.e(f"s_cmp_gt_u32 s63, {i*1024}")
            a.e(f"s_cbranch_scc0 {Ls}")
            a.e(f"s_mov_b32 s48, {r*H_*6 + i*16384}")
            a.e(f"buffer_store_dwordx4 {v(Q[i],4)}, v1, s[36:39], s48 offen{NT_REC_ST}")
        a.label(Ls)
        stamp(a, 10 + 2*r)
        if r == 0:
            a.e("s_mov_b64 exec, s[50:51]")
            a.e("s_nop 1")
    if PROF:
        a.e("s_waitcnt vmcnt(0)")
        stamp(a, 13); stamp_rt(a, 14)
        stamp_out(a, 14, 15, 0)
    if DBGT:
        a.e("s_waitcnt vmcnt(0)")
        dbg_time(a, 0, 1)
    a.label("k1_end")
    a.e("s_endpgm")
    return LDS

def kd(name, vgpr, sgpr):
    return f""".p2align 6
.amdhsa_kernel {name}
  .amdhsa_next_free_vgpr {vgpr}
  .amdhsa_next_free_sgpr {sgpr}
  .amdhsa_accum_offset {(vgpr+3)//4*4}
  .amdhsa_group_segment_fixed_size 0
  .amdhsa_kernarg_size 112
  .amdhsa_user_sgpr_count 2
  .amdhsa_user_sgpr_kernarg_segment_ptr 1
  .amdhsa_system_sgpr_workgroup_id_x 1
  .amdhsa_float_denorm_mode_32 3
  .amdhsa_float_denorm_mode_16_64 3
.end_amdhsa_kernel
"""

HEADER = """; Kernarg layout (112 bytes, ptrs only, base s[0:1]):
"""

def main(out):
    global PROF
    import os
    PROF = bool(os.environ.get("PROF"))
    a = Asm()
    kernels = []
    lds1 = gen_k1(a)
    kernels.append(("k1_kernel", (256, 1024, lds1), 128, 102))
    try:
        from gen23 import gen_k2, gen_k3
        lds2 = gen_k2(a)
        kernels.append(("k2_kernel", (256, 1024, lds2), 128, 100))
        gen_k3(a)
        kernels.append(("k3_kernel", (1250, 256, 0), 64, 100))
    except ImportError:
        pass
    order = os.environ.get("ORDER")
    if order and "0" in order:
        a.raw(".p2align 8"); a.raw(".type k0_kernel,@function"); a.label("k0_kernel"); a.e("s_endpgm")
        kernels.append(("k0_kernel", (256, 64, 0), 8, 16))
    txt = HEADER
    byname = {n: x for n, x, _, _ in kernels}
    seq = [f"k{c}_kernel" for c in order] if order else [n for n, _, _, _ in kernels]
    for n in seq:
        g, b, l = byname[n]
        txt += f"; @launch kernel={n} grid=({g},1,1) block=({b},1,1) lds={l}\n"
    txt += '.amdgcn_target "amdgcn-amd-amdhsa--gfx950"\n.text\n'
    for n, _, _, _ in kernels:
        txt += f".globl {n}\n"
    txt += a.text()
    txt += '.section .rodata,"a"\n'
    for n, _, vg, sg in kernels:
        txt += kd(n, vg, sg)
    open(out, "w").write(txt)

if __name__ == "__main__":
    main(sys.argv[1] if len(sys.argv) > 1 else "standalone__molecular_angular_gemnet__graph.s")
```
